```python
import torch

def _softmax(x, axis=-1):
    return torch.softmax(x, dim=axis)
def _gelu(x):
    return torch.nn.functional.gelu(x, approximate="tanh")
def _silu(x):
    return torch.nn.functional.silu(x)
def _sigmoid(x):
    return torch.sigmoid(x)
def _layernorm(x, axis=-1, eps=1e-5):
    m = x.mean(dim=axis, keepdim=True)
    v = x.var(dim=axis, keepdim=True, unbiased=False)
    return (x - m) / torch.sqrt(v + eps)
def _scatter_add(tgt, idx, src, axis=0):
    return tgt.clone().index_add_(axis, idx, src)
def _segment_sum(src, seg, n):
    out = torch.zeros((n,) + src.shape[1:], dtype=src.dtype)
    return out.index_add_(0, seg, src)
def _pad(x, pw):
    flat = tuple(v for pair in reversed(pw) for v in pair)
    return torch.nn.functional.pad(x, flat)

kernel_name = 'standalone__gqa_softmax__near_ridge'

def setup_inputs():

    _w = (lambda a: (lambda t: t.to(torch.bfloat16) if t.is_floating_point() else t)(torch.as_tensor(a)))
    B, Hq, Hkv, Sq, Sk, D = 16, 16, 8, 512, 512, 256
    return {
        "q": _w((lambda *s: torch.randn(*s, dtype=torch.bfloat16) * 0.8)(B, Hq, Sq, D)),
        "k": _w((lambda *s: torch.randn(*s, dtype=torch.bfloat16) * 0.8)(B, Hkv, Sk, D)),
        "v": _w((lambda *s: torch.randn(*s, dtype=torch.bfloat16) * 0.05)(B, Hkv, Sk, D)),
    }

def reference(q, k, v):
    B, Hq, Sq, D = q.shape
    Hkv = k.shape[1]
    rep = Hq // Hkv
    k = (lambda x, n, axis: torch.repeat_interleave(x, n, dim=axis))(k, rep, axis=1)
    v = (lambda x, n, axis: torch.repeat_interleave(x, n, dim=axis))(v, rep, axis=1)
    scale = D ** -0.5
    scores = torch.einsum("bhqd,bhkd->bhqk", q, k) * scale
    p = _softmax(scores, axis=-1)
    return torch.einsum("bhqk,bhkd->bhqd", p, v)
```

```python
import re

class I:
    __slots__ = ("text", "kind", "r", "w", "meta")
    def __init__(self, text, kind, r=(), w=(), **meta):
        self.text = text
        self.kind = kind
        self.r = set(r)
        self.w = set(w)
        self.meta = meta
    def __repr__(self):
        return self.text

def R(t, base, n=1):
    return [f"{t}{base+i}" for i in range(n)]

def rs(t, base, n=1):
    if n == 1:
        return f"{t}{base}"
    return f"{t}[{base}:{base+n-1}]"

class Reg:
    __slots__ = ("t", "b", "n")
    def __init__(self, t, b, n=1):
        self.t, self.b, self.n = t, b, n
    def __str__(self):
        return rs(self.t, self.b, self.n)
    def regs(self):
        return R(self.t, self.b, self.n)
    def __getitem__(self, i):
        if isinstance(i, slice):
            a = i.start or 0
            e = self.n if i.stop is None else i.stop
            return Reg(self.t, self.b + a, e - a)
        assert 0 <= i < self.n
        return Reg(self.t, self.b + i, 1)

def V(b, n=1): return Reg("v", b, n)
def A(b, n=1): return Reg("a", b, n)
def S(b, n=1): return Reg("s", b, n)

def _regs(x):
    if isinstance(x, Reg):
        return x.regs()
    if isinstance(x, str) and x in ("vcc", "m0", "exec", "scc"):
        return [x]
    return []

def mfma16(D, Aop, Bop, C):
    c = str(C)
    return I(f"v_mfma_f32_16x16x32_bf16 {D}, {Aop}, {Bop}, {c}", "mfma",
             r=_regs(Aop) + _regs(Bop) + _regs(C), w=_regs(D),
             passes=4, D=D.regs(), C=_regs(C), AB=_regs(Aop) + _regs(Bop))

TRANS = ("v_exp_f32", "v_rcp_f32", "v_log_f32", "v_rsq_f32", "v_sqrt_f32")

def valu(op, dst, *srcs, mods="", rw=False, extra_r=(), extra_w=()):
    kind = "trans" if op in TRANS else "valu"
    if op.startswith("v_permlane"):
        kind = "perm"
    ops = ", ".join(str(x) for x in (dst,) + srcs)
    r = []
    for s_ in srcs:
        if isinstance(s_, str) and s_.startswith("-"):
            m = re.match(r"-([vs])(\d+)$", s_)
            if m:
                r.append(m.group(1) + m.group(2))
            continue
        r += _regs(s_)
    w = _regs(dst)
    if rw or kind == "perm":
        r += w
    if kind == "perm":
        w = w + _regs(srcs[0])
    return I(f"{op} {ops}{(' ' + mods) if mods else ''}", kind, r=list(r) + list(extra_r), w=list(w) + list(extra_w))

def vcmp(op, src0, src1):
    return I(f"{op} vcc, {src0}, {src1}", "valu", r=_regs(src0) + _regs(src1), w=["vcc"], vcmp=True)

def salu(op, dst, *srcs, scc_w=True, scc_r=False):
    ops = ", ".join(str(x) for x in (dst,) + srcs)
    r = []
    for s_ in srcs:
        r += _regs(s_)
    w = _regs(dst)
    if op.startswith("s_cmp"):
        r += _regs(dst)
        w = []
    if scc_r or op.startswith("s_cselect") or op.startswith("s_addc"):
        r.append("scc")
    if op.startswith(("s_add", "s_sub", "s_cmp", "s_lshl", "s_lshr", "s_and", "s_or", "s_xor")):
        w = w + ["scc"]
    return I(f"{op} {ops}", "salu", r=r, w=w)

def ds_read(op, dst, addr, offset=0):
    assert 0 <= offset < 65536, offset
    return I(f"{op} {dst}, {addr} offset:{offset}", "ds", r=_regs(addr), w=_regs(dst))

def ds_write(op, addr, data, offset=0):
    assert 0 <= offset < 65536, offset
    return I(f"{op} {addr}, {data} offset:{offset}", "dsw", r=_regs(addr) + _regs(data), w=[])

def buf_load(dst, vaddr, srd, soff, offset=0, mods="", op="buffer_load_dwordx4"):
    assert 0 <= offset < 4096
    return I(f"{op} {dst}, {vaddr}, {srd}, {soff} offen offset:{offset}{(' ' + mods) if mods else ''}", "vmem",
             r=_regs(vaddr) + _regs(srd) + _regs(soff), w=_regs(dst))

def buf_dma(vaddr, srd, soff, offset=0, mods=""):
    assert 0 <= offset < 4096
    return I(f"buffer_load_dwordx4 {vaddr}, {srd}, {soff} offen offset:{offset}{(' ' + mods) if mods else ''} lds", "dma",
             r=_regs(vaddr) + _regs(srd) + _regs(soff) + ["m0"], w=[])

def buf_store(data, vaddr, srd, soff, offset=0, mods="", op="buffer_store_dwordx4"):
    assert 0 <= offset < 4096
    return I(f"{op} {data}, {vaddr}, {srd}, {soff} offen offset:{offset}{(' ' + mods) if mods else ''}", "store",
             r=_regs(data) + _regs(vaddr) + _regs(srd) + _regs(soff), w=[], data=_regs(data))

def wait(vm=None, lgkm=None):
    t = "s_waitcnt"
    if vm is not None:
        assert 0 <= vm <= 63
        t += f" vmcnt({vm})"
    if lgkm is not None:
        assert 0 <= lgkm <= 15
        t += f" lgkmcnt({lgkm})"
    return I(t, "wait", vm=vm, lgkm=lgkm)

def wait_for(regs):
    return I("s_waitcnt lgkmcnt(?)", "wait", vm=None, lgkm=None, need=list(regs))

def resolve_waits(seq, prev=()):
    ctx = list(prev)
    out = []
    for ins in seq:
        if ins.kind == "wait" and ins.meta.get("need") is not None:
            need = set(ins.meta["need"])
            cnt = 0
            found = False
            for p in reversed(ctx):
                if p.kind == "ds" and (p.w & need):
                    found = True
                    break
                if p.kind in ("ds", "dsw"):
                    cnt += 1
                if p.kind == "wait" and p.meta.get("lgkm") == 0:
                    break
            if found:
                w = wait(lgkm=min(cnt, 15))
                out.append(w); ctx.append(w)
            continue
        out.append(ins); ctx.append(ins)
    return out

def nop(n=0):
    return I(f"s_nop {n}", "nop", n=n + 1)

def bar():
    return I("s_barrier", "bar")

def label(name):
    return I(f"{name}:", "label", name=name)

def branch(op, target):
    r = []
    if "vcc" in op: r = ["vcc"]
    if "scc" in op: r = ["scc"]
    return I(f"{op} {target}", "branch", r=r, target=target)

def raw(text, kind="salu", r=(), w=()):
    return I(text, kind, r=r, w=w)

def comment(t):
    return I(f"; {t}", "label")

def states(ins):
    if ins.kind == "label":
        return 0
    if ins.kind == "nop":
        return ins.meta["n"]
    return 1

VECK = ("valu", "trans", "perm")

def required(prod, cons):
    need = 0
    pw, cr, cw = prod.w, cons.r, cons.w
    if prod.kind == "mfma":
        P = prod.meta["passes"]
        D = set(prod.meta["D"])
        tab_valu = {4: 8, 8: 12}[P]
        if cons.kind == "mfma":
            cC = set(cons.meta["C"])
            cAB = set(cons.meta["AB"])
            if D & cAB:
                need = max(need, {4: 8, 8: 12}[P])
            if D & cC:
                if cons.meta["C"] == prod.meta["D"] and cons.meta["passes"] == P:
                    pass
                else:
                    need = max(need, {4: 6, 8: 10}[P])
            elif D & set(cons.meta["D"]):
                need = max(need, {4: 6, 8: 10}[P])
        elif cons.kind in VECK:
            if D & (cr | cw):
                need = max(need, tab_valu)
            if set(prod.meta["C"]) & cw:
                need = max(need, {4: 3, 8: 7}[P])
        elif cons.kind in ("ds", "dsw", "vmem", "dma", "store"):
            if D & (cr | cw):
                need = max(need, tab_valu)
    if prod.kind in VECK:
        vw = {x for x in pw if x[0] in "va" and x not in ("vcc",)}
        if cons.kind == "mfma" and vw & cr:
            need = max(need, 2)
        if cons.kind == "perm" and vw & (cr | cw):
            need = max(need, 2)
        if prod.kind == "trans" and cons.kind in ("valu", "perm") and vw & cr:
            need = max(need, 1)
        if prod.kind == "trans" and cons.kind in ("ds", "dsw", "vmem", "store", "dma") and vw & cr:
            need = max(need, 1)
        if cons.text.startswith(("v_readfirstlane", "v_readlane")) and vw & cr:
            need = max(need, 1)
        sw = {x for x in pw if x[0] == "s" or x == "vcc"}
        if sw:
            if cons.kind in ("vmem", "dma", "store") and sw & cr:
                need = max(need, 5)
            if cons.kind in VECK and sw & cr:
                need = max(need, 2)
            if cons.kind == "salu" and sw & cr:
                need = max(need, 4)
            if cons.kind == "branch" and sw & cr:
                need = max(need, 1)
    if prod.kind == "store" and "x4" in prod.text:
        d = set(prod.meta["data"])
        if cons.kind in VECK and d & cw:
            need = max(need, 2)
        elif d & cw:
            need = max(need, 1)
    if prod.kind == "salu" and "m0" in pw and cons.kind == "dma":
        need = max(need, 1)
    return need

WINDOW = 24

def fix(seq, prev=(), log=None):
    out = list(prev)
    n0 = len(out)
    inserted = 0
    for ins in seq:
        if ins.kind not in ("label",):
            need = 0
            dist = 0
            for p in reversed(out[-WINDOW * 2:]):
                if dist >= WINDOW:
                    break
                rq = required(p, ins)
                if rq > dist:
                    need = max(need, rq - dist)
                dist += states(p)
            while need > 0:
                k = min(need, 16)
                out.append(nop(k - 1))
                inserted += 1
                if log is not None:
                    log.append((ins.text, k))
                need -= k
        out.append(ins)
    return out[n0:], inserted

def check(seq, name=""):
    probs = []
    lg = []
    vm = []
    for i, ins in enumerate(seq):
        if ins.kind == "label":
            continue
        dist = 0
        j = i - 1
        while j >= 0 and dist < WINDOW:
            p = seq[j]
            rq = required(p, ins)
            if rq > dist:
                probs.append(f"{name}: hazard {rq} needed, {dist} have: [{p.text}] -> [{ins.text}] at {i}")
            dist += states(p)
            j -= 1
        if ins.kind == "wait":
            n = ins.meta["lgkm"]
            if n is not None:
                while len(lg) > n: lg.pop(0)
            n = ins.meta["vm"]
            if n is not None:
                while len(vm) > n: vm.pop(0)
            continue
        touched = ins.r | ins.w
        for q, nm in ((lg, "lgkm"), (vm, "vm")):
            for pend in q:
                if pend & touched:
                    if not (pend & ins.r) and ((nm == "lgkm" and ins.kind == "ds") or (nm == "vm" and ins.kind == "vmem")):
                        continue
                    probs.append(f"{name}: {nm} pending {sorted(pend & touched)} used by [{ins.text}] at {i}")
        if ins.kind == "ds":
            lg.append(set(ins.w))
        elif ins.kind == "dsw":
            lg.append(set())
        elif ins.kind == "vmem":
            vm.append(set(ins.w))
        elif ins.kind in ("dma", "store"):
            vm.append(set())
        if len(lg) > 15 and False:
            probs.append(f"{name}: lgkm overflow at {i}")
    return probs

def render(seq):
    out = []
    for ins in seq:
        if ins.kind == "label":
            out.append(ins.text)
        else:
            out.append("    " + ins.text)
    return "\n".join(out) + "\n"
```

```python
import sys, math
from isa import *

NAME = "standalone__gqa_softmax__near_ridge_kernel"

class Opt:
    diag = False
    sm_start = 64
    sm_end = 184
    thr = 65536.0
    q_nt = False
    o_nt = False
OPT = Opt()

AK = [V(2), V(3)]
AV = [V(4), V(5), V(6), V(7)]
DK, DV = V(8), V(9)
NMC = [V(10 + i) for i in range(4)]
L = [V(14 + i) for i in range(4)]
TS = [V(18 + i) for i in range(4)]
T = [V(22 + i) for i in range(10)]
TQ = V(24, 4)
FR = [V(32 + 4 * i, 4) for i in range(4)]
QA = V(48)
EW = V(49)
ER = V(50)
OA = V(51)
INV = [V(52 + i) for i in range(4)]
SB = [V(64, 32), V(96, 32)]

def Sreg(buf, r, kb):
    return V(SB[buf].b + r * 8 + kb * 4, 4)
def Sel(buf, r, e):
    return V(SB[buf].b + r * 8 + e)
def Preg(buf, r):
    return V(SB[buf].b + r * 8, 4)
def Oreg(db, r):
    if r < 2:
        return V(128 + (r * 16 + db) * 4, 4)
    return A(128 + ((r - 2) * 16 + db) * 4, 4)
def Qreg(r, s):
    return A((r * 8 + s) * 4, 4)

SQ, SK, SV, SO = S(4, 4), S(8, 4), S(12, 4), S(16, 4)
sWAVE, sWB = S(20), S(21)
sKOFF, sVOFF, sCNT, sITEM, sC, sTHR = S(22), S(23), S(24), S(25), S(26), S(27)
sQOFF, sKTILE, sKEND, sKNEXT = S(28), S(29), S(30), S(31)
sKVB, sT0, sT1, sT2 = S(32), S(33), S(34), S(35)
sPAIR0, sQUART = S(36), S(37)
sDBG = S(40, 4)
sSTAMP = 44

KSLOT = [0, 16384]
VSLOT = [32768, 49152]
EPI_BASE = 65536
EPI_WAVE = 24576
EPI_ROW = 528
EPI_BUF = 16 * EPI_ROW
TILE = 16384
OOB = 0x80000000

def k_read(frag, slot):
    s, kb = frag >> 1, frag & 1
    return ds_read("ds_read_b128", FR[frag % 4], AK[s & 1], KSLOT[slot] + (s >> 1) * 4096 + kb * 2048)

def v_read(db, u, slot):
    fr = FR[(16 + db) % 4]
    return ds_read("ds_read_b64_tr_b16", fr[2 * u:2 * u + 2], AV[db & 3], VSLOT[slot] + (db >> 2) * 4096 + u * 2048)

def qk_mfma(pos, nxt):
    s, kb, r = pos >> 3, (pos >> 2) & 1, pos & 3
    D = Sreg(nxt, r, kb)
    return mfma16(D, FR[(2 * s + kb) % 4], Qreg(r, s), 0 if s == 0 else D)

def pv_mfma(pos, cur, first):
    db, r = pos >> 2, pos & 3
    D = Oreg(db, r)
    return mfma16(D, FR[(16 + db) % 4], Preg(cur, r), 0 if first else D)

def dma_m0(slotbase, cb):
    return salu("s_add_u32", "m0", sWB, slotbase + cb * (4096 - 128))
def dma_k(cb):
    return buf_dma(DK, SK, sKOFF, cb * 128)
def dma_v(cb):
    return buf_dma(DV, SV, sVOFF, cb * 128)

def adv(sreg):
    return [salu("s_add_u32", sreg, sreg, TILE), salu("s_cmp_eq_u32", sreg, sKEND), salu("s_cselect_b32", sreg, sKNEXT, sreg)]

class It:
    def __init__(self, kind, fn, deps=(), name=""):
        self.kind, self.fn, self.deps, self.name = kind, fn, list(deps), name
        self.gap = None

def softmax_items():
    F, E, Ad, C = {}, {}, {}, {}
    for p in range(16):
        r, k = p >> 2, p & 3
        for x in range(2):
            e = 2 * k + x
            F[p, x] = It("1", (lambda b, r=r, e=e: valu("v_fma_f32", Sel(b, r, e), Sel(b, r, e), sC, NMC[r])), name=f"F{p}{x}")
            E[p, x] = It("E", (lambda b, r=r, e=e: valu("v_exp_f32", Sel(b, r, e), Sel(b, r, e))), [(F[p, x], 1)], name=f"E{p}{x}")
        if k == 0:
            Ad[p, 0] = None
            Ad[p, 1] = It("1", (lambda b, r=r: valu("v_add_f32", TS[r], Sel(b, r, 0), Sel(b, r, 1))), [(E[p, 0], 1), (E[p, 1], 1)], name=f"A{p}")
        else:
            Ad[p, 0] = It("1", (lambda b, r=r, e=2 * k: valu("v_add_f32", TS[r], TS[r], Sel(b, r, e))), [(E[p, 0], 1), (Ad[p - 1, 1], 0)], name=f"A{p}0")
            Ad[p, 1] = It("1", (lambda b, r=r, e=2 * k + 1: valu("v_add_f32", TS[r], TS[r], Sel(b, r, e))), [(E[p, 1], 1), (Ad[p, 0], 0)], name=f"A{p}1")
        deps = [(E[p, 0], 1), (E[p, 1], 1), (Ad[p, 1], 0)]
        if k > 0:
            deps.append((C[p - 1], 0))
        C[p] = It("1", (lambda b, r=r, k=k: valu("v_cvt_pk_bf16_f32", Sel(b, r, k), Sel(b, r, 2 * k), Sel(b, r, 2 * k + 1))), deps, name=f"C{p}")
    order = [F[0, 0], F[0, 1], E[0, 0], E[0, 1]]
    for p in range(16):
        if p + 1 < 16:
            order += [F[p + 1, 0], F[p + 1, 1]]
        if Ad[p, 0] is not None:
            order.append(Ad[p, 0])
        order += [Ad[p, 1], C[p]]
        if p + 1 < 16:
            order += [E[p + 1, 0], E[p + 1, 1]]
    last_adds = [Ad[4 * r + 3, 1] for r in range(4)]
    return order, last_adds

def check_items(last_adds):
    t0, t1 = T[0], T[1]
    c0 = It("1", lambda b: valu("v_add_f32", t0, TS[0], TS[1]), [(last_adds[0], 0), (last_adds[1], 0)], "c0")
    c1 = It("1", lambda b: valu("v_add_f32", t1, TS[2], TS[3]), [(last_adds[2], 0), (last_adds[3], 0)], "c1")
    c2 = It("1", lambda b: valu("v_add_f32", t0, t0, t1), [(c0, 0), (c1, 0)], "c2")
    c3 = It("1", lambda b: vcmp("v_cmp_nge_f32", sTHR, t0), [(c2, 0)], "c3")
    return [c0, c1, c2, c3]

class Gap:
    def __init__(self):
        self.sc = []
        self.ds = None
        self.L = None
        self.vec = []
        self.tail = []
    def cap(self):
        if self.L is not None:
            return 0
        used = sum(2 if it.kind == "E" else 1 for it in self.vec)
        return (1 if self.ds is not None else 2) - used

def build_schedule():
    G = [Gap() for _ in range(128)]
    nreads = lambda m: 1 if (m % 32) < 16 else 2
    for n in range(1, 33):
        g = 4 * n - 1
        G[g].sc.append(("W", n % 32, lambda c, n=n: wait_for(FR[n % 4].regs())))
        m = n + 3
        if m < 16:
            G[g].ds = ("K", m, lambda c, m=m: k_read(m, 1 - c["p"]))
        elif m < 32:
            G[g].ds = ("V", m, lambda c, m=m: v_read(m - 16, 0, c["p"]))
            G[g + 1].ds = ("V", m, lambda c, m=m: v_read(m - 16, 1, c["p"]))
        else:
            G[g].ds = ("Kn", m, lambda c, m=m: k_read(m - 32, c["p"]))
    G[0].sc.append(("barV", 0, lambda c: wait(vm=c.get("vmV", 4))))
    G[1].sc.append(("barV", 1, lambda c: bar()))
    for cb in range(4):
        G[4 + 4 * cb].sc.append(("dmaV", cb, lambda c, cb=cb: dma_m0(VSLOT[1 - c["p"]], cb)))
        G[5 + 4 * cb].L = ("dmaV", cb, lambda c, cb=cb: dma_v(cb))
    for i in range(3):
        G[20 + i].sc.append(("advV", i, lambda c, i=i: adv(sVOFF)[i]))
    G[65].sc.append(("barK", 0, lambda c: wait(vm=c.get("vmK", 4))))
    G[66].sc.append(("barK", 1, lambda c: bar()))
    for cb in range(4):
        G[69 + 4 * cb].sc.append(("dmaK", cb, lambda c, cb=cb: dma_m0(KSLOT[1 - c["p"]], cb)))
        G[70 + 4 * cb].L = ("dmaK", cb, lambda c, cb=cb: dma_k(cb))
    for i in range(3):
        G[84 + i].sc.append(("advK", i, lambda c, i=i: adv(sKOFF)[i]))
    order, last_adds = softmax_items()
    chk = check_items(last_adds)
    allit = order + chk
    n = len(order)
    span = OPT.sm_end - OPT.sm_start
    lo = {}
    for i, it in enumerate(order):
        lo[it] = OPT.sm_start + int(span * i / n)
    for it in chk:
        lo[it] = OPT.sm_start
    pend = list(allit)
    for gg in range(OPT.sm_start, 128 + 62):
        g = G[gg % 128]
        while True:
            cap = g.cap()
            if cap <= 0:
                break
            pick = None
            for it in pend[:12]:
                if lo[it] > gg:
                    continue
                if it.kind == "E" and (cap < 2 or g.ds is not None):
                    continue
                ok = all(d.gap is not None and d.gap + dist <= gg for d, dist in it.deps)
                if ok:
                    pick = it
                    break
            if pick is None:
                break
            pick.gap = gg
            g.vec.append(pick)
            pend.remove(pick)
        if not pend:
            break
    assert not pend, [it.name for it in pend]
    gchk = chk[-1].gap
    gb = gchk + 1
    assert gb < 128 + 60
    G[gb % 128].sc.append(("chkbr", 0, lambda c: branch("s_cbranch_vccnz", f"L_slow{c['p']}_{c['tag']}")))
    G[gb % 128].sc.append(("chkret", 0, lambda c: label(f"L_ret{c['p']}_{c['tag']}")))
    ladd = [It("1", (lambda b, r=r: valu("v_add_f32", L[r], L[r], TS[r])), name=f"l{r}") for r in range(4)]
    gg = gb
    pend = list(ladd)
    while pend:
        g = G[gg % 128]
        while g.cap() > 0 and pend:
            it = pend.pop(0)
            it.gap = gg
            g.vec.append(it)
        gg += 1
    assert gg <= 128 + 63
    G[gg % 128].sc.append(("ktile", 0, lambda c: salu("s_add_u32", sKTILE, sKTILE, TILE)))
    return G, gchk

def emit_gap(g, gi, c, skip=()):
    out = []
    buf = (1 - c["p"]) if gi >= 64 else c["p"]
    for tag, idx, fn in g.sc:
        if tag in skip: continue
        out.append(fn(c))
    if g.ds is not None and g.ds[0] not in skip:
        out.append(g.ds[2](c))
    if g.L is not None and g.L[0] not in skip:
        out.append(g.L[2](c))
    if not (("sm" in skip) or ("smA" in skip and gi < 64) or ("smB" in skip and gi >= 64)):
        for it in g.vec:
            out.append(it.fn(buf))
    return out

def phaseA(G, c, mf=True, skip=()):
    out = []
    for pos in range(64):
        if mf:
            out.append(qk_mfma(pos, 1 - c["p"]))
        out += emit_gap(G[pos], pos, c, skip)
    return out

def phaseB(G, c, first=False, skip=()):
    out = []
    for pos in range(64):
        out.append(pv_mfma(pos, c["p"], first))
        out += emit_gap(G[64 + pos], 64 + pos, c, skip)
    return out

def xreduce(op, X, tmp):
    out = []
    for swap in ("v_permlane32_swap_b32", "v_permlane16_swap_b32"):
        for r in range(4):
            out.append(valu("v_mov_b32", tmp[r], X[r]))
        for r in range(4):
            out.append(valu(swap, X[r], tmp[r]))
        for r in range(4):
            out.append(valu(op, X[r], X[r], tmp[r]))
    return out

def rowmax(buf, X):
    out = []
    for r in range(4):
        out.append(valu("v_max3_f32", X[r], Sel(buf, r, 0), Sel(buf, r, 1), Sel(buf, r, 2)))
    for r in range(4):
        out.append(valu("v_max3_f32", X[r], X[r], Sel(buf, r, 3), Sel(buf, r, 4)))
    for r in range(4):
        out.append(valu("v_max3_f32", X[r], X[r], Sel(buf, r, 5), Sel(buf, r, 6)))
    for r in range(4):
        out.append(valu("v_max_f32", X[r], X[r], Sel(buf, r, 7)))
    return out

def softmax_linear(buf, which=None):
    order, _ = softmax_items()
    return [it.fn(buf) for it in order]

def slow_path(p, tag):
    o = [label(f"L_slow{p}_{tag}"), nop(7)]
    for kb in range(2):
        o.append(salu("s_add_u32", sT0, sKTILE, kb * 8192))
        for s in range(8):
            o.append(buf_load(TQ, QA, SK, sT0, s * 64))
            o.append(wait(vm=0))
            for r in range(4):
                D = Sreg(p, r, kb)
                o.append(mfma16(D, TQ, Qreg(r, s), 0 if s == 0 else D))
            o.append(nop(3))
    o.append(nop(7))
    X = TS
    o += rowmax(p, X)
    o += xreduce("v_max_f32", X, [TQ[i] for i in range(4)])
    al = [TQ[i] for i in range(4)]
    for r in range(4):
        o.append(valu("v_mul_f32", X[r], sC, X[r]))
        o.append(valu("v_sub_f32", X[r], 0, X[r]))
        o.append(valu("v_min_f32", X[r], X[r], NMC[r]))
        o.append(valu("v_sub_f32", al[r], X[r], NMC[r]))
        o.append(valu("v_exp_f32", al[r], al[r]))
        o.append(valu("v_mov_b32", NMC[r], X[r]))
    for r in range(4):
        o.append(valu("v_mul_f32", L[r], L[r], al[r]))
    for r in range(4):
        for db in range(16):
            O = Oreg(db, r)
            for i in range(4):
                if O.t == "v":
                    o.append(valu("v_mul_f32", O[i], O[i], al[r]))
                else:
                    o.append(valu("v_accvgpr_read_b32", T[0], O[i]))
                    o.append(valu("v_mul_f32", T[0], T[0], al[r]))
                    o.append(valu("v_accvgpr_write_b32", O[i], T[0]))
    o += softmax_linear(p)
    o.append(nop(1))
    o.append(branch("s_branch", f"L_ret{p}_{tag}"))
    o, _ = fix(o)
    return o

def stamp(i):
    if not OPT.diag:
        return []
    return [raw(f"s_memtime s[{sSTAMP + 2 * i}:{sSTAMP + 2 * i + 1}]", "salu"), wait(lgkm=0)]

def setup():
    o = []
    e = o.append
    e(salu("s_cmp_ge_u32", S(2), 256))
    e(branch("s_cbranch_scc1", "L_end"))
    for i, srd in enumerate((SQ, SK, SV, SO)):
        e(raw(f"s_load_dwordx2 s[{srd.b}:{srd.b + 1}], s[0:1], {8 * i}", "salu", w=srd[0:2].regs()))
    if OPT.diag:
        e(raw(f"s_load_dwordx2 s[{sDBG.b}:{sDBG.b + 1}], s[0:1], 40", "salu", w=sDBG[0:2].regs()))
    for srd, nb in ((SQ, 0x4000000), (SK, 0x2000000), (SV, 0x2000000), (SO, 0x4000000)):
        e(salu("s_mov_b32", srd[2], nb))
        e(salu("s_mov_b32", srd[3], 0x20000))
    if OPT.diag:
        e(salu("s_mov_b32", sDBG[2], 0x10000000))
        e(salu("s_mov_b32", sDBG[3], 0x20000))
    lane, i16, Gq, t0, t1, t2 = T[0], T[1], T[2], T[3], T[4], T[5]
    e(valu("v_and_b32", lane, 63, V(0)))
    e(valu("v_lshrrev_b32", t0, 6, V(0)))
    e(nop(0))
    e(I(f"v_readfirstlane_b32 {sWAVE}, {t0}", "valu", r=t0.regs(), w=sWAVE.regs()))
    e(valu("v_and_b32", i16, 15, lane))
    e(valu("v_lshrrev_b32", Gq, 4, lane))
    e(nop(1))
    e(salu("s_lshl_b32", sWB, sWAVE, 10))
    e(valu("v_lshrrev_b32", t0, 1, i16))
    for b in range(2):
        e(valu("v_add_u32", t1, 4 * b, Gq))
        e(valu("v_xor_b32", t1, t1, t0))
        e(valu("v_lshlrev_b32", t1, 4, t1))
        e(valu("v_lshlrev_b32", t2, 7, i16))
        e(valu("v_add_u32", AK[b], t1, t2))
    key = T[6]
    e(valu("v_lshrrev_b32", t0, 2, i16))
    e(valu("v_lshlrev_b32", key, 2, Gq))
    e(valu("v_add_u32", key, key, t0))
    e(valu("v_lshrrev_b32", t0, 1, key))
    e(valu("v_and_b32", t0, 3, t0))
    e(valu("v_and_b32", t2, 3, i16))
    e(valu("v_lshlrev_b32", t2, 3, t2))
    e(valu("v_lshlrev_b32", key, 7, key))
    e(valu("v_add_u32", key, key, t2))
    for pi in range(4):
        e(valu("v_xor_b32", t1, pi, t0))
        e(valu("v_lshlrev_b32", t1, 5, t1))
        e(valu("v_add_u32", AV[pi], t1, key))
    dk = T[6]
    e(valu("v_lshrrev_b32", dk, 3, lane))
    e(salu("s_lshl_b32", sT0, sWAVE, 3))
    e(valu("v_add_u32", dk, sT0, dk))
    e(valu("v_and_b32", t2, 7, lane))
    e(valu("v_lshrrev_b32", t0, 1, dk))
    e(valu("v_and_b32", t1, 7, t0))
    e(valu("v_xor_b32", t1, t1, t2))
    e(valu("v_lshlrev_b32", t1, 4, t1))
    e(valu("v_lshlrev_b32", T[7], 9, dk))
    e(valu("v_add_u32", DK, T[7], t1))
    e(valu("v_and_b32", t1, 3, t0))
    e(valu("v_lshlrev_b32", t1, 1, t1))
    e(valu("v_xor_b32", t1, t1, t2))
    e(valu("v_lshlrev_b32", t1, 4, t1))
    e(valu("v_add_u32", DV, T[7], t1))
    e(valu("v_lshlrev_b32", t0, 9, i16))
    e(valu("v_lshlrev_b32", t1, 4, Gq))
    e(valu("v_add_u32", QA, t0, t1))
    e(salu("s_mul_i32", sT0, sWAVE, EPI_WAVE))
    e(salu("s_add_u32", sT0, sT0, EPI_BASE))
    e(valu("v_mul_u32_u24", t0, EPI_ROW, i16))
    e(valu("v_lshlrev_b32", t1, 3, Gq))
    e(valu("v_add_u32", t0, t0, t1))
    e(valu("v_add_u32", EW, sT0, t0))
    e(valu("v_lshrrev_b32", t0, 5, lane))
    e(valu("v_mul_u32_u24", t0, EPI_ROW, t0))
    e(valu("v_and_b32", t1, 31, lane))
    e(valu("v_lshlrev_b32", t1, 4, t1))
    e(valu("v_add_u32", t0, t0, t1))
    e(valu("v_add_u32", ER, sT0, t0))
    e(valu("v_lshlrev_b32", OA, 4, lane))
    cval = (256 ** -0.5) * math.log2(math.e)
    import struct
    e(salu("s_mov_b32", sC, hex(struct.unpack("<I", struct.pack("<f", cval))[0])))
    e(salu("s_mov_b32", sTHR, hex(struct.unpack("<I", struct.pack("<f", OPT.thr))[0])))
    e(salu("s_and_b32", sT0, S(2), 7))
    e(salu("s_lshr_b32", sT1, S(2), 3))
    e(salu("s_and_b32", sQUART, sT1, 3))
    e(salu("s_lshr_b32", sT1, sT1, 2))
    e(salu("s_lshl_b32", sT0, sT0, 3))
    e(salu("s_add_u32", sPAIR0, sT0, sT1))
    e(salu("s_mov_b32", sITEM, 0))
    e(wait(lgkm=0))
    return o

def item_setup():
    o = []
    e = o.append
    e(salu("s_lshl_b32", sT0, sITEM, 6))
    e(salu("s_add_u32", sT0, sT0, sPAIR0))
    e(salu("s_lshl_b32", sKVB, sT0, 18))
    e(salu("s_lshl_b32", sQOFF, sT0, 19))
    e(salu("s_lshl_b32", sT1, sQUART, 17))
    e(salu("s_add_u32", sQOFF, sQOFF, sT1))
    e(salu("s_lshl_b32", sT1, sWAVE, 15))
    e(salu("s_add_u32", sQOFF, sQOFF, sT1))
    e(salu("s_add_u32", sKEND, sKVB, 16 * TILE))
    e(salu("s_add_u32", sT1, sKVB, 64 << 18))
    e(salu("s_cmp_eq_u32", sITEM, 0))
    e(salu("s_cselect_b32", sKNEXT, sT1, OOB))
    e(salu("s_mov_b32", sKTILE, sKVB))
    return o

def q_loads():
    o = []
    for r in range(4):
        o.append(salu("s_add_u32", sT0, sQOFF, r * 8192))
        for s in range(8):
            o.append(buf_load(Qreg(r, s), QA, SQ, sT0, s * 64, "nt" if OPT.q_nt else ""))
    return o

def dma_tile(kind, slot, soff):
    o = []
    for cb in range(4):
        o.append(dma_m0((KSLOT if kind == "K" else VSLOT)[slot], cb))
        o.append(nop(0))
        o.append(buf_dma(DK if kind == "K" else DV, SK if kind == "K" else SV, soff, cb * 128))
    return o

def lead_in_K(slot):
    return [k_read(f, slot) for f in range(4)] + [wait_for(FR[0].regs())]
def lead_in_V(slot):
    o = []
    for db in range(4):
        o += [v_read(db, 0, slot), v_read(db, 1, slot)]
    return o + [wait_for(FR[0].regs())]

def epilogue():
    o = []
    e = o.append
    tmp = [T[i] for i in range(4)]
    o += xreduce("v_add_f32", L, tmp)
    for r in range(4):
        e(valu("v_rcp_f32", INV[r], L[r]))
    PK = [V(64 + i) for i in range(8)]
    RB = [V(96 + 4 * i, 4) for i in range(8)]
    AT = [V(72 + i) for i in range(16)]
    def write_block(r):
        w = []
        base = (r & 1) * EPI_BUF
        for db in range(16):
            O = Oreg(db, r)
            if O.t == "a":
                src = V(72 + 4 * (db & 3), 4)
                for i in range(4):
                    w.append(valu("v_accvgpr_read_b32", src[i], O[i]))
            else:
                src = O
            inv2 = V(INV[r].b & ~1, 2)
            sel = INV[r].b & 1
            mods = f"op_sel:[0,{sel}] op_sel_hi:[1,{sel}]"
            for i in (0, 2):
                w.append(valu("v_pk_mul_f32", src[i:i + 2], src[i:i + 2], inv2, mods=mods))
            pk = V(64 + 2 * (db & 3), 2)
            w.append(valu("v_cvt_pk_bf16_f32", pk[0], src[0], src[1]))
            w.append(valu("v_cvt_pk_bf16_f32", pk[1], src[2], src[3]))
            w.append(ds_write("ds_write_b64", EW, pk, base + db * 32))
        return w
    def read_store(r):
        w = []
        base = (r & 1) * EPI_BUF
        for i in range(8):
            w.append(ds_read("ds_read_b128", RB[i], ER, base + i * 2 * EPI_ROW))
        w.append(salu("s_add_u32", sT0, sQOFF, r * 8192))
        w.append(salu("s_add_u32", sT1, sQOFF, r * 8192 + 4096))
        for i in range(8):
            w.append(wait(lgkm=7 - i))
            w.append(buf_store(RB[i], OA, SO, sT0 if i < 4 else sT1, (i & 3) * 1024, "nt" if OPT.o_nt else ""))
        return w
    for r in range(4):
        o += write_block(r)
        o += read_store(r)
    return o

def build():
    G, gchk = build_schedule()
    pre = setup()
    it = [label("L_item")]
    it += item_setup()
    it += stamp(0)
    it.append(salu("s_cmp_eq_u32", sITEM, 0))
    it.append(branch("s_cbranch_scc0", "L_skip_first"))
    it.append(salu("s_add_u32", sT2, sKVB, TILE))
    it += dma_tile("K", 0, sKVB)
    it += dma_tile("K", 1, sT2)
    it += dma_tile("V", 0, sKVB)
    it.append(label("L_skip_first"))
    it.append(salu("s_add_u32", sKOFF, sKVB, 2 * TILE))
    it.append(salu("s_add_u32", sVOFF, sKVB, TILE))
    it += q_loads()
    it.append(wait(vm=0))
    it.append(bar())
    it += stamp(1)
    c = dict(p=1, tag="x")
    it += lead_in_K(0)
    skipP = ("V", "Kn", "barV", "dmaV", "advV", "sm", "chkbr", "chkret", "ktile")
    a = phaseA(G, c, True, skipP)
    it += a
    it.append(wait(lgkm=0))
    it.append(bar())
    it += dma_tile("K", 0, sKOFF)
    it += adv(sKOFF)
    it.append(nop(7))
    it += rowmax(0, TS)
    it += xreduce("v_max_f32", TS, [TQ[i] for i in range(4)])
    for r in range(4):
        it.append(valu("v_mul_f32", TS[r], sC, TS[r]))
        it.append(valu("v_sub_f32", NMC[r], 0, TS[r]))
        it.append(valu("v_mov_b32", L[r], 0))
    c = dict(p=1, tag="x")
    for gi in range(64, 128):
        for x in G[gi].vec:
            it.append(x.fn(0))
    it += lead_in_K(1)
    it += stamp(2)
    c0 = dict(p=0, tag="i0", vmV=4)
    it += phaseA(G, c0)
    it += phaseB(G, c0, first=True)
    it.append(salu("s_mov_b32", sCNT, 7))
    it = resolve_waits(it)
    it, n_ins = fix(it)
    body = [label("L_loop")]
    c1 = dict(p=1, tag="lp")
    c2 = dict(p=0, tag="lp")
    body += phaseA(G, c1) + phaseB(G, c1)
    b2 = phaseA(G, c2) + phaseB(G, c2)
    idx = max(i for i, x in enumerate(b2) if x.kind == "mfma" and i < len(b2) - 8)
    mf = [i for i, x in enumerate(b2) if x.kind == "mfma"]
    b2.insert(mf[-2] + 1, salu("s_cmp_lg_u32", sCNT, 0))
    b2.insert(mf[-3] + 1, salu("s_sub_u32", sCNT, sCNT, 1))
    body += b2
    body.append(branch("s_cbranch_scc1", "L_loop"))
    body = resolve_waits(body, prev=body)
    tail = []
    c15 = dict(p=1, tag="i15")
    tail.append(wait(lgkm=0))
    tail += stamp(3)
    a15 = phaseA(G, c15, False, ("W", "K", "V", "Kn"))
    tail += a15
    tail += lead_in_V(1)
    tail += phaseB(G, c15, False, ("Kn", "dmaK", "advK", "smB"))
    tail.append(wait(lgkm=0))
    tail += stamp(4)
    tail.append(nop(7))
    tail += epilogue()
    tail += stamp(5)
    tail.append(salu("s_add_u32", sITEM, sITEM, 1))
    tail.append(salu("s_cmp_lt_u32", sITEM, 2))
    if OPT.diag:
        pass
    tail.append(branch("s_cbranch_scc1", "L_item_j"))
    tail = resolve_waits(tail, prev=body)
    tail, n2 = fix(tail, prev=body[-40:])
    fin = []
    if OPT.diag:
        fin += diag_out()
    fin.append(branch("s_branch", "L_end"))
    fin.append(label("L_item_j"))
    if OPT.diag:
        fin += diag_out()
    fin.append(branch("s_branch", "L_item"))
    slow = slow_path(0, "i0") + slow_path(1, "lp") + slow_path(0, "lp") + slow_path(1, "i15")
    pre, _ = fix(pre)
    probs = []
    probs += check(pre + it + body + body + tail, "main")
    print(f"; nops inserted: item {n_ins}, tail {n2}; check gap {gchk}", file=sys.stderr)
    lb, nb = fix(body + body)
    if nb:
        print("WARNING: loop body needs nops:", nb, file=sys.stderr)
    for p in probs[:40]:
        print("PROBLEM", p, file=sys.stderr)
    prog = pre + it + [raw(".p2align 6", "label")] + body + tail + fin + slow + [label("L_end")]
    return prog, G

def diag_out():
    o = []
    e = o.append
    e(wait(vm=0, lgkm=0))
    e(salu("s_lshl_b32", sT0, S(2), 1))
    e(salu("s_add_u32", sT0, sT0, sITEM))
    e(salu("s_sub_u32", sT0, sT0, 1))
    e(salu("s_lshl_b32", sT0, sT0, 2))
    e(salu("s_add_u32", sT0, sT0, sWAVE))
    e(salu("s_lshl_b32", sT0, sT0, 6))
    e(raw("s_memrealtime s[56:57]", "salu"))
    e(wait(lgkm=0))
    for i in range(7):
        e(valu("v_mov_b32", T[0], S(sSTAMP + 2 * i)))
        e(valu("v_mov_b32", T[1], S(sSTAMP + 2 * i + 1)))
        e(valu("v_mov_b32", T[8], 0))
        e(I(f"buffer_store_dwordx2 v[22:23], {T[8]}, {sDBG}, {sT0} offen offset:{8 * i}", "store", r=["v22", "v23", T[8].regs()[0]] + sDBG.regs(), data=["v22", "v23"]))
        e(wait(vm=0))
    o, _ = fix(o)
    return o

def dump_schedule(G):
    for i, g in enumerate(G):
        s = " ".join(t[0] + str(t[1]) for t in g.sc)
        v = ""
        if g.ds: v += f" {g.ds[0]}{g.ds[1]}"
        if g.L: v += f" L:{g.L[0]}"
        v += " " + " ".join(it.name for it in g.vec)
        print(f"{i:3d} [{s:16s}] {v}", file=sys.stderr)

HEADER = """; GQA attention forward, bf16, B=16 Hq=16 Hkv=8 S=512 D=256.  Generated by my own generator script.
; @launch grid=(256,1,1) block=(256,1,1) lds=163840
.amdgcn_target "amdgcn-amd-amdhsa--gfx950"
.text
.globl {name}
.p2align 8
.type {name},@function
{name}:
"""
FOOTER = """    s_endpgm
.section .rodata,"a"
.p2align 6
.amdhsa_kernel {name}
  .amdhsa_next_free_vgpr 512
  .amdhsa_next_free_sgpr 102
  .amdhsa_accum_offset 256
  .amdhsa_group_segment_fixed_size 0
  .amdhsa_kernarg_size 48
  .amdhsa_user_sgpr_count 2
  .amdhsa_user_sgpr_kernarg_segment_ptr 1
  .amdhsa_system_sgpr_workgroup_id_x 1
  .amdhsa_float_denorm_mode_32 3
.end_amdhsa_kernel
"""

def generate(path):
    prog, G = build()
    txt = HEADER.format(name=NAME) + render(prog) + FOOTER.format(name=NAME)
    open(path, "w").write(txt)
    return G

if __name__ == "__main__":
    out = sys.argv[1] if len(sys.argv) > 1 else "k.s"
    for a in sys.argv[2:]:
        k, v = a.split("=")
        cur = getattr(OPT, k)
        setattr(OPT, k, type(cur)(eval(v)))
    G = generate(out)
    if "-" in sys.argv[0:0]:
        pass
    import os
    if os.environ.get("DUMP"):
        dump_schedule(G)
```

```python
import sys, math
from isa import *

NAME = "standalone__gqa_softmax__near_ridge_kernel"

class Opt:
    diag = False
    sm_start = 64
    sm_end = 184
    thr = 65536.0
    q_nt = False
    o_nt = False
    kv_nt = False
OPT = Opt()

AK = [V(2), V(3)]
AV = [V(4), V(5), V(6), V(7)]
DK, DV = V(8), V(9)
NMC = [V(10 + i) for i in range(4)]
L = [V(14 + i) for i in range(4)]
TS = [V(18 + i) for i in range(4)]
T = [V(22 + i) for i in range(10)]
TQ = V(24, 4)
FR = [V(32 + 4 * i, 4) for i in range(4)]
QA = V(48)
EW = V(49)
ER = V(50)
OA = V(51)
INV = [V(52 + i) for i in range(4)]
SB = [V(64, 32), V(96, 32)]

def Sreg(buf, r, kb):
    return V(SB[buf].b + r * 8 + kb * 4, 4)
def Sel(buf, r, e):
    return V(SB[buf].b + r * 8 + e)
def Preg(buf, r):
    return V(SB[buf].b + r * 8, 4)
def Oreg(db, r):
    if r < 2:
        return V(128 + (r * 16 + db) * 4, 4)
    return A(128 + ((r - 2) * 16 + db) * 4, 4)
def Qreg(r, s):
    return A((r * 8 + s) * 4, 4)

SQ, SK, SV, SO = S(4, 4), S(8, 4), S(12, 4), S(16, 4)
sWAVE, sWB = S(20), S(21)
sKOFF, sVOFF, sCNT, sITEM, sC, sTHR = S(22), S(23), S(24), S(25), S(26), S(27)
sQOFF, sKTILE, sKEND, sKNEXT = S(28), S(29), S(30), S(31)
sKVB, sT0, sT1, sT2 = S(32), S(33), S(34), S(35)
sPAIR0, sQUART = S(36), S(37)
sDBG = S(40, 4)
sSTAMP = 44

KSLOT = [0, 16384]
VSLOT = [32768, 49152]
EPI_BASE = 65536
EPI_WAVE = 24576
EPI_ROW = 528
EPI_BUF = 16 * EPI_ROW
TILE = 16384
OOB = 0x80000000

def k_read(frag, slot):
    s, kb = frag >> 1, frag & 1
    return ds_read("ds_read_b128", FR[frag % 4], AK[s & 1], KSLOT[slot] + (s >> 1) * 4096 + kb * 2048)

def v_read(db, u, slot):
    fr = FR[(16 + db) % 4]
    return ds_read("ds_read_b64_tr_b16", fr[2 * u:2 * u + 2], AV[db & 3], VSLOT[slot] + (db >> 2) * 4096 + u * 2048)

def qk_mfma(pos, nxt):
    s, kb, r = pos >> 3, (pos >> 2) & 1, pos & 3
    D = Sreg(nxt, r, kb)
    return mfma16(D, FR[(2 * s + kb) % 4], Qreg(r, s), 0 if s == 0 else D)

def pv_mfma(pos, cur, first):
    db, r = pos >> 2, pos & 3
    D = Oreg(db, r)
    return mfma16(D, FR[(16 + db) % 4], Preg(cur, r), 0 if first else D)

def dma_m0(slotbase, cb):
    return salu("s_add_u32", "m0", sWB, slotbase + cb * (4096 - 128))
def dma_k(cb):
    return buf_dma(DK, SK, sKOFF, cb * 128, 'nt' if OPT.kv_nt else '')
def dma_v(cb):
    return buf_dma(DV, SV, sVOFF, cb * 128, 'nt' if OPT.kv_nt else '')

def adv(sreg):
    return [salu("s_add_u32", sreg, sreg, TILE), salu("s_cmp_eq_u32", sreg, sKEND), salu("s_cselect_b32", sreg, sKNEXT, sreg)]

class It:
    def __init__(self, kind, fn, deps=(), name=""):
        self.kind, self.fn, self.deps, self.name = kind, fn, list(deps), name
        self.gap = None

def softmax_items():
    F, E, Ad, C = {}, {}, {}, {}
    for p in range(16):
        r, k = p >> 2, p & 3
        for x in range(2):
            e = 2 * k + x
            F[p, x] = It("1", (lambda b, r=r, e=e: valu("v_fma_f32", Sel(b, r, e), Sel(b, r, e), sC, NMC[r])), name=f"F{p}{x}")
            E[p, x] = It("E", (lambda b, r=r, e=e: valu("v_exp_f32", Sel(b, r, e), Sel(b, r, e))), [(F[p, x], 1)], name=f"E{p}{x}")
        if k == 0:
            Ad[p, 0] = None
            Ad[p, 1] = It("1", (lambda b, r=r: valu("v_add_f32", TS[r], Sel(b, r, 0), Sel(b, r, 1))), [(E[p, 0], 1), (E[p, 1], 1)], name=f"A{p}")
        else:
            Ad[p, 0] = It("1", (lambda b, r=r, e=2 * k: valu("v_add_f32", TS[r], TS[r], Sel(b, r, e))), [(E[p, 0], 1), (Ad[p - 1, 1], 0)], name=f"A{p}0")
            Ad[p, 1] = It("1", (lambda b, r=r, e=2 * k + 1: valu("v_add_f32", TS[r], TS[r], Sel(b, r, e))), [(E[p, 1], 1), (Ad[p, 0], 0)], name=f"A{p}1")
        deps = [(E[p, 0], 1), (E[p, 1], 1), (Ad[p, 1], 0)]
        if k > 0:
            deps.append((C[p - 1], 0))
        C[p] = It("1", (lambda b, r=r, k=k: valu("v_cvt_pk_bf16_f32", Sel(b, r, k), Sel(b, r, 2 * k), Sel(b, r, 2 * k + 1))), deps, name=f"C{p}")
    order = [F[0, 0], F[0, 1], E[0, 0], E[0, 1]]
    for p in range(16):
        if p + 1 < 16:
            order += [F[p + 1, 0], F[p + 1, 1]]
        if Ad[p, 0] is not None:
            order.append(Ad[p, 0])
        order += [Ad[p, 1], C[p]]
        if p + 1 < 16:
            order += [E[p + 1, 0], E[p + 1, 1]]
    last_adds = [Ad[4 * r + 3, 1] for r in range(4)]
    return order, last_adds

def check_items(last_adds):
    t0, t1 = T[0], T[1]
    c0 = It("1", lambda b: valu("v_add_f32", t0, TS[0], TS[1]), [(last_adds[0], 0), (last_adds[1], 0)], "c0")
    c1 = It("1", lambda b: valu("v_add_f32", t1, TS[2], TS[3]), [(last_adds[2], 0), (last_adds[3], 0)], "c1")
    c2 = It("1", lambda b: valu("v_add_f32", t0, t0, t1), [(c0, 0), (c1, 0)], "c2")
    c3 = It("1", lambda b: vcmp("v_cmp_nge_f32", sTHR, t0), [(c2, 0)], "c3")
    return [c0, c1, c2, c3]

class Gap:
    def __init__(self):
        self.sc = []
        self.ds = None
        self.L = None
        self.vec = []
        self.tail = []
    def cap(self):
        if self.L is not None:
            return 0
        used = sum(2 if it.kind == "E" else 1 for it in self.vec)
        return (1 if self.ds is not None else 2) - used

def build_schedule():
    G = [Gap() for _ in range(128)]
    nreads = lambda m: 1 if (m % 32) < 16 else 2
    for n in range(1, 33):
        g = 4 * n - 1
        G[g].sc.append(("W", n % 32, lambda c, n=n: wait_for(FR[n % 4].regs())))
        m = n + 3
        if m < 16:
            G[g].ds = ("K", m, lambda c, m=m: k_read(m, 1 - c["p"]))
        elif m < 32:
            G[g].ds = ("V", m, lambda c, m=m: v_read(m - 16, 0, c["p"]))
            G[g + 1].ds = ("V", m, lambda c, m=m: v_read(m - 16, 1, c["p"]))
        else:
            G[g].ds = ("Kn", m, lambda c, m=m: k_read(m - 32, c["p"]))
    G[0].sc.append(("barV", 0, lambda c: wait(vm=c.get("vmV", 4))))
    G[1].sc.append(("barV", 1, lambda c: bar()))
    for cb in range(4):
        G[4 + 4 * cb].sc.append(("dmaV", cb, lambda c, cb=cb: dma_m0(VSLOT[1 - c["p"]], cb)))
        G[5 + 4 * cb].L = ("dmaV", cb, lambda c, cb=cb: dma_v(cb))
    for i in range(3):
        G[20 + i].sc.append(("advV", i, lambda c, i=i: adv(sVOFF)[i]))
    G[65].sc.append(("barK", 0, lambda c: wait(vm=c.get("vmK", 4))))
    G[66].sc.append(("barK", 1, lambda c: bar()))
    for cb in range(4):
        G[69 + 4 * cb].sc.append(("dmaK", cb, lambda c, cb=cb: dma_m0(KSLOT[1 - c["p"]], cb)))
        G[70 + 4 * cb].L = ("dmaK", cb, lambda c, cb=cb: dma_k(cb))
    for i in range(3):
        G[84 + i].sc.append(("advK", i, lambda c, i=i: adv(sKOFF)[i]))
    order, last_adds = softmax_items()
    chk = check_items(last_adds)
    allit = order + chk
    n = len(order)
    span = OPT.sm_end - OPT.sm_start
    lo = {}
    for i, it in enumerate(order):
        lo[it] = OPT.sm_start + int(span * i / n)
    for it in chk:
        lo[it] = OPT.sm_start
    pend = list(allit)
    for gg in range(OPT.sm_start, 128 + 62):
        g = G[gg % 128]
        while True:
            cap = g.cap()
            if cap <= 0:
                break
            pick = None
            for it in pend[:12]:
                if lo[it] > gg:
                    continue
                if it.kind == "E" and (cap < 2 or g.ds is not None):
                    continue
                ok = all(d.gap is not None and d.gap + dist <= gg for d, dist in it.deps)
                if ok:
                    pick = it
                    break
            if pick is None:
                break
            pick.gap = gg
            g.vec.append(pick)
            pend.remove(pick)
        if not pend:
            break
    assert not pend, [it.name for it in pend]
    gchk = chk[-1].gap
    gb = gchk + 1
    assert gb < 128 + 60
    G[gb % 128].sc.append(("chkbr", 0, lambda c: branch("s_cbranch_vccnz", f"L_slow{c['p']}_{c['tag']}")))
    G[gb % 128].sc.append(("chkret", 0, lambda c: label(f"L_ret{c['p']}_{c['tag']}")))
    ladd = [It("1", (lambda b, r=r: valu("v_add_f32", L[r], L[r], TS[r])), name=f"l{r}") for r in range(4)]
    gg = gb
    pend = list(ladd)
    while pend:
        g = G[gg % 128]
        while g.cap() > 0 and pend:
            it = pend.pop(0)
            it.gap = gg
            g.vec.append(it)
        gg += 1
    assert gg <= 128 + 63
    G[gg % 128].sc.append(("ktile", 0, lambda c: salu("s_add_u32", sKTILE, sKTILE, TILE)))
    return G, gchk

def emit_gap(g, gi, c, skip=()):
    out = []
    buf = (1 - c["p"]) if gi >= 64 else c["p"]
    for tag, idx, fn in g.sc:
        if tag in skip: continue
        out.append(fn(c))
    if g.ds is not None and g.ds[0] not in skip:
        out.append(g.ds[2](c))
    if g.L is not None and g.L[0] not in skip:
        out.append(g.L[2](c))
    if not (("sm" in skip) or ("smA" in skip and gi < 64) or ("smB" in skip and gi >= 64)):
        for it in g.vec:
            out.append(it.fn(buf))
    return out

def phaseA(G, c, mf=True, skip=()):
    out = []
    for pos in range(64):
        if mf:
            out.append(qk_mfma(pos, 1 - c["p"]))
        out += emit_gap(G[pos], pos, c, skip)
    return out

def phaseB(G, c, first=False, skip=()):
    out = []
    for pos in range(64):
        out.append(pv_mfma(pos, c["p"], first))
        out += emit_gap(G[64 + pos], 64 + pos, c, skip)
    return out

def xreduce(op, X, tmp):
    out = []
    for swap in ("v_permlane32_swap_b32", "v_permlane16_swap_b32"):
        for r in range(4):
            out.append(valu("v_mov_b32", tmp[r], X[r]))
        for r in range(4):
            out.append(valu(swap, X[r], tmp[r]))
        for r in range(4):
            out.append(valu(op, X[r], X[r], tmp[r]))
    return out

def rowmax(buf, X):
    out = []
    for r in range(4):
        out.append(valu("v_max3_f32", X[r], Sel(buf, r, 0), Sel(buf, r, 1), Sel(buf, r, 2)))
    for r in range(4):
        out.append(valu("v_max3_f32", X[r], X[r], Sel(buf, r, 3), Sel(buf, r, 4)))
    for r in range(4):
        out.append(valu("v_max3_f32", X[r], X[r], Sel(buf, r, 5), Sel(buf, r, 6)))
    for r in range(4):
        out.append(valu("v_max_f32", X[r], X[r], Sel(buf, r, 7)))
    return out

def softmax_linear(buf, which=None):
    order, _ = softmax_items()
    return [it.fn(buf) for it in order]

def slow_path(p, tag):
    o = [label(f"L_slow{p}_{tag}"), nop(7)]
    for kb in range(2):
        o.append(salu("s_add_u32", sT0, sKTILE, kb * 8192))
        for s in range(8):
            o.append(buf_load(TQ, QA, SK, sT0, s * 64))
            o.append(wait(vm=0))
            for r in range(4):
                D = Sreg(p, r, kb)
                o.append(mfma16(D, TQ, Qreg(r, s), 0 if s == 0 else D))
            o.append(nop(3))
    o.append(nop(7))
    X = TS
    o += rowmax(p, X)
    o += xreduce("v_max_f32", X, [TQ[i] for i in range(4)])
    al = [TQ[i] for i in range(4)]
    for r in range(4):
        o.append(valu("v_mul_f32", X[r], sC, X[r]))
        o.append(valu("v_sub_f32", X[r], 0, X[r]))
        o.append(valu("v_min_f32", X[r], X[r], NMC[r]))
        o.append(valu("v_sub_f32", al[r], X[r], NMC[r]))
        o.append(valu("v_exp_f32", al[r], al[r]))
        o.append(valu("v_mov_b32", NMC[r], X[r]))
    for r in range(4):
        o.append(valu("v_mul_f32", L[r], L[r], al[r]))
    for r in range(4):
        for db in range(16):
            O = Oreg(db, r)
            for i in range(4):
                if O.t == "v":
                    o.append(valu("v_mul_f32", O[i], O[i], al[r]))
                else:
                    o.append(valu("v_accvgpr_read_b32", T[0], O[i]))
                    o.append(valu("v_mul_f32", T[0], T[0], al[r]))
                    o.append(valu("v_accvgpr_write_b32", O[i], T[0]))
    o += softmax_linear(p)
    o.append(nop(1))
    o.append(branch("s_branch", f"L_ret{p}_{tag}"))
    o, _ = fix(o)
    return o

def stamp(i):
    if not OPT.diag:
        return []
    return [raw(f"s_memtime s[{sSTAMP + 2 * i}:{sSTAMP + 2 * i + 1}]", "salu"), wait(lgkm=0)]

def setup():
    o = []
    e = o.append
    e(salu("s_cmp_ge_u32", S(2), 256))
    e(branch("s_cbranch_scc1", "L_end"))
    for i, srd in enumerate((SQ, SK, SV, SO)):
        e(raw(f"s_load_dwordx2 s[{srd.b}:{srd.b + 1}], s[0:1], {8 * i}", "salu", w=srd[0:2].regs()))
    if OPT.diag:
        e(raw(f"s_load_dwordx2 s[{sDBG.b}:{sDBG.b + 1}], s[0:1], 40", "salu", w=sDBG[0:2].regs()))
    for srd, nb in ((SQ, 0x4000000), (SK, 0x2000000), (SV, 0x2000000), (SO, 0x4000000)):
        e(salu("s_mov_b32", srd[2], nb))
        e(salu("s_mov_b32", srd[3], 0x20000))
    if OPT.diag:
        e(salu("s_mov_b32", sDBG[2], 0x10000000))
        e(salu("s_mov_b32", sDBG[3], 0x20000))
    lane, i16, Gq, t0, t1, t2 = T[0], T[1], T[2], T[3], T[4], T[5]
    e(valu("v_and_b32", lane, 63, V(0)))
    e(valu("v_lshrrev_b32", t0, 6, V(0)))
    e(nop(0))
    e(I(f"v_readfirstlane_b32 {sWAVE}, {t0}", "valu", r=t0.regs(), w=sWAVE.regs()))
    e(valu("v_and_b32", i16, 15, lane))
    e(valu("v_lshrrev_b32", Gq, 4, lane))
    e(nop(1))
    e(salu("s_lshl_b32", sWB, sWAVE, 10))
    e(valu("v_lshrrev_b32", t0, 1, i16))
    for b in range(2):
        e(valu("v_add_u32", t1, 4 * b, Gq))
        e(valu("v_xor_b32", t1, t1, t0))
        e(valu("v_lshlrev_b32", t1, 4, t1))
        e(valu("v_lshlrev_b32", t2, 7, i16))
        e(valu("v_add_u32", AK[b], t1, t2))
    key = T[6]
    e(valu("v_lshrrev_b32", t0, 2, i16))
    e(valu("v_lshlrev_b32", key, 2, Gq))
    e(valu("v_add_u32", key, key, t0))
    e(valu("v_lshrrev_b32", t0, 1, key))
    e(valu("v_and_b32", t0, 3, t0))
    e(valu("v_and_b32", t2, 3, i16))
    e(valu("v_lshlrev_b32", t2, 3, t2))
    e(valu("v_lshlrev_b32", key, 7, key))
    e(valu("v_add_u32", key, key, t2))
    for pi in range(4):
        e(valu("v_xor_b32", t1, pi, t0))
        e(valu("v_lshlrev_b32", t1, 5, t1))
        e(valu("v_add_u32", AV[pi], t1, key))
    dk = T[6]
    e(valu("v_lshrrev_b32", dk, 3, lane))
    e(salu("s_lshl_b32", sT0, sWAVE, 3))
    e(valu("v_add_u32", dk, sT0, dk))
    e(valu("v_and_b32", t2, 7, lane))
    e(valu("v_lshrrev_b32", t0, 1, dk))
    e(valu("v_and_b32", t1, 7, t0))
    e(valu("v_xor_b32", t1, t1, t2))
    e(valu("v_lshlrev_b32", t1, 4, t1))
    e(valu("v_lshlrev_b32", T[7], 9, dk))
    e(valu("v_add_u32", DK, T[7], t1))
    e(valu("v_and_b32", t1, 3, t0))
    e(valu("v_lshlrev_b32", t1, 1, t1))
    e(valu("v_xor_b32", t1, t1, t2))
    e(valu("v_lshlrev_b32", t1, 4, t1))
    e(valu("v_add_u32", DV, T[7], t1))
    e(valu("v_lshlrev_b32", t0, 9, i16))
    e(valu("v_lshlrev_b32", t1, 4, Gq))
    e(valu("v_add_u32", QA, t0, t1))
    e(salu("s_mul_i32", sT0, sWAVE, EPI_WAVE))
    e(salu("s_add_u32", sT0, sT0, EPI_BASE))
    e(valu("v_mul_u32_u24", t0, EPI_ROW, i16))
    e(valu("v_lshlrev_b32", t1, 3, Gq))
    e(valu("v_add_u32", t0, t0, t1))
    e(valu("v_add_u32", EW, sT0, t0))
    e(valu("v_lshrrev_b32", t0, 5, lane))
    e(valu("v_mul_u32_u24", t0, EPI_ROW, t0))
    e(valu("v_and_b32", t1, 31, lane))
    e(valu("v_lshlrev_b32", t1, 4, t1))
    e(valu("v_add_u32", t0, t0, t1))
    e(valu("v_add_u32", ER, sT0, t0))
    e(valu("v_lshlrev_b32", OA, 4, lane))
    cval = (256 ** -0.5) * math.log2(math.e)
    import struct
    e(salu("s_mov_b32", sC, hex(struct.unpack("<I", struct.pack("<f", cval))[0])))
    e(salu("s_mov_b32", sTHR, hex(struct.unpack("<I", struct.pack("<f", OPT.thr))[0])))
    e(salu("s_and_b32", sT0, S(2), 7))
    e(salu("s_lshr_b32", sT1, S(2), 3))
    e(salu("s_and_b32", sQUART, sT1, 3))
    e(salu("s_lshr_b32", sT1, sT1, 2))
    e(salu("s_lshl_b32", sT0, sT0, 3))
    e(salu("s_add_u32", sPAIR0, sT0, sT1))
    e(salu("s_mov_b32", sITEM, 0))
    e(wait(lgkm=0))
    return o

def item_setup():
    o = []
    e = o.append
    e(salu("s_lshl_b32", sT0, sITEM, 6))
    e(salu("s_add_u32", sT0, sT0, sPAIR0))
    e(salu("s_lshl_b32", sKVB, sT0, 18))
    e(salu("s_lshl_b32", sQOFF, sT0, 19))
    e(salu("s_lshl_b32", sT1, sQUART, 17))
    e(salu("s_add_u32", sQOFF, sQOFF, sT1))
    e(salu("s_lshl_b32", sT1, sWAVE, 15))
    e(salu("s_add_u32", sQOFF, sQOFF, sT1))
    e(salu("s_add_u32", sKEND, sKVB, 16 * TILE))
    e(salu("s_add_u32", sT1, sKVB, 64 << 18))
    e(salu("s_cmp_eq_u32", sITEM, 0))
    e(salu("s_cselect_b32", sKNEXT, sT1, OOB))
    e(salu("s_mov_b32", sKTILE, sKVB))
    return o

def q_loads():
    o = []
    for r in range(4):
        o.append(salu("s_add_u32", sT0, sQOFF, r * 8192))
        for s in range(8):
            o.append(buf_load(Qreg(r, s), QA, SQ, sT0, s * 64, "nt" if OPT.q_nt else ""))
    return o

def dma_tile(kind, slot, soff):
    o = []
    for cb in range(4):
        o.append(dma_m0((KSLOT if kind == "K" else VSLOT)[slot], cb))
        o.append(nop(0))
        o.append(buf_dma(DK if kind == "K" else DV, SK if kind == "K" else SV, soff, cb * 128, 'nt' if OPT.kv_nt else ''))
    return o

def lead_in_K(slot):
    return [k_read(f, slot) for f in range(4)] + [wait_for(FR[0].regs())]
def lead_in_V(slot):
    o = []
    for db in range(4):
        o += [v_read(db, 0, slot), v_read(db, 1, slot)]
    return o + [wait_for(FR[0].regs())]

def epilogue():
    o = []
    e = o.append
    tmp = [T[i] for i in range(4)]
    o += xreduce("v_add_f32", L, tmp)
    for r in range(4):
        e(valu("v_rcp_f32", INV[r], L[r]))
    PK = [V(64 + i) for i in range(8)]
    RB = [V(96 + 4 * i, 4) for i in range(8)]
    AT = [V(72 + i) for i in range(16)]
    def write_block(r):
        w = []
        base = (r & 1) * EPI_BUF
        for db in range(16):
            O = Oreg(db, r)
            if O.t == "a":
                src = V(72 + 4 * (db & 3), 4)
                for i in range(4):
                    w.append(valu("v_accvgpr_read_b32", src[i], O[i]))
            else:
                src = O
            inv2 = V(INV[r].b & ~1, 2)
            sel = INV[r].b & 1
            mods = f"op_sel:[0,{sel}] op_sel_hi:[1,{sel}]"
            for i in (0, 2):
                w.append(valu("v_pk_mul_f32", src[i:i + 2], src[i:i + 2], inv2, mods=mods))
            pk = V(64 + 2 * (db & 3), 2)
            w.append(valu("v_cvt_pk_bf16_f32", pk[0], src[0], src[1]))
            w.append(valu("v_cvt_pk_bf16_f32", pk[1], src[2], src[3]))
            w.append(ds_write("ds_write_b64", EW, pk, base + db * 32))
        return w
    def read_store(r):
        w = []
        base = (r & 1) * EPI_BUF
        for i in range(8):
            w.append(ds_read("ds_read_b128", RB[i], ER, base + i * 2 * EPI_ROW))
        w.append(salu("s_add_u32", sT0, sQOFF, r * 8192))
        w.append(salu("s_add_u32", sT1, sQOFF, r * 8192 + 4096))
        for i in range(8):
            w.append(wait(lgkm=7 - i))
            w.append(buf_store(RB[i], OA, SO, sT0 if i < 4 else sT1, (i & 3) * 1024, "nt" if OPT.o_nt else ""))
        return w
    for r in range(4):
        o += write_block(r)
        o += read_store(r)
    return o

def build():
    G, gchk = build_schedule()
    pre = setup()
    it = [label("L_item")]
    it += item_setup()
    it += stamp(0)
    it.append(salu("s_cmp_eq_u32", sITEM, 0))
    it.append(branch("s_cbranch_scc0", "L_skip_first"))
    it.append(salu("s_add_u32", sT2, sKVB, TILE))
    it += dma_tile("K", 0, sKVB)
    it += dma_tile("K", 1, sT2)
    it += dma_tile("V", 0, sKVB)
    it.append(label("L_skip_first"))
    it.append(salu("s_add_u32", sKOFF, sKVB, 2 * TILE))
    it.append(salu("s_add_u32", sVOFF, sKVB, TILE))
    it += q_loads()
    it.append(wait(vm=0))
    it.append(bar())
    it += stamp(1)
    c = dict(p=1, tag="x")
    it += lead_in_K(0)
    skipP = ("V", "Kn", "barV", "dmaV", "advV", "sm", "chkbr", "chkret", "ktile")
    a = phaseA(G, c, True, skipP)
    it += a
    it.append(wait(lgkm=0))
    it.append(bar())
    it += dma_tile("K", 0, sKOFF)
    it += adv(sKOFF)
    it.append(nop(7))
    it += rowmax(0, TS)
    it += xreduce("v_max_f32", TS, [TQ[i] for i in range(4)])
    for r in range(4):
        it.append(valu("v_mul_f32", TS[r], sC, TS[r]))
        it.append(valu("v_sub_f32", NMC[r], 0, TS[r]))
        it.append(valu("v_mov_b32", L[r], 0))
    c = dict(p=1, tag="x")
    for gi in range(64, 128):
        for x in G[gi].vec:
            it.append(x.fn(0))
    it += lead_in_K(1)
    it += stamp(2)
    c0 = dict(p=0, tag="i0", vmV=4)
    it += phaseA(G, c0)
    it += phaseB(G, c0, first=True)
    it.append(salu("s_mov_b32", sCNT, 7))
    it = resolve_waits(it)
    it, n_ins = fix(it)
    body = [label("L_loop")]
    c1 = dict(p=1, tag="lp")
    c2 = dict(p=0, tag="lp")
    body += phaseA(G, c1) + phaseB(G, c1)
    b2 = phaseA(G, c2) + phaseB(G, c2)
    idx = max(i for i, x in enumerate(b2) if x.kind == "mfma" and i < len(b2) - 8)
    mf = [i for i, x in enumerate(b2) if x.kind == "mfma"]
    b2.insert(mf[-2] + 1, salu("s_cmp_lg_u32", sCNT, 0))
    b2.insert(mf[-3] + 1, salu("s_sub_u32", sCNT, sCNT, 1))
    body += b2
    body.append(branch("s_cbranch_scc1", "L_loop"))
    body = resolve_waits(body, prev=body)
    tail = []
    c15 = dict(p=1, tag="i15")
    tail.append(wait(lgkm=0))
    tail += stamp(3)
    a15 = phaseA(G, c15, False, ("W", "K", "V", "Kn"))
    tail += a15
    tail += lead_in_V(1)
    tail += phaseB(G, c15, False, ("Kn", "dmaK", "advK", "smB"))
    tail.append(wait(lgkm=0))
    tail += stamp(4)
    tail.append(nop(7))
    tail += epilogue()
    tail += stamp(5)
    tail.append(salu("s_add_u32", sITEM, sITEM, 1))
    tail.append(salu("s_cmp_lt_u32", sITEM, 2))
    if OPT.diag:
        pass
    tail.append(branch("s_cbranch_scc1", "L_item_j"))
    tail = resolve_waits(tail, prev=body)
    tail, n2 = fix(tail, prev=body[-40:])
    fin = []
    if OPT.diag:
        fin += diag_out()
    fin.append(branch("s_branch", "L_end"))
    fin.append(label("L_item_j"))
    if OPT.diag:
        fin += diag_out()
    fin.append(branch("s_branch", "L_item"))
    slow = slow_path(0, "i0") + slow_path(1, "lp") + slow_path(0, "lp") + slow_path(1, "i15")
    pre, _ = fix(pre)
    probs = []
    probs += check(pre + it + body + body + tail, "main")
    print(f"; nops inserted: item {n_ins}, tail {n2}; check gap {gchk}", file=sys.stderr)
    lb, nb = fix(body + body)
    if nb:
        print("WARNING: loop body needs nops:", nb, file=sys.stderr)
    for p in probs[:40]:
        print("PROBLEM", p, file=sys.stderr)
    prog = pre + it + [raw(".p2align 6", "label")] + body + tail + fin + slow + [label("L_end")]
    return prog, G

def diag_out():
    o = []
    e = o.append
    e(wait(vm=0, lgkm=0))
    e(salu("s_lshl_b32", sT0, S(2), 1))
    e(salu("s_add_u32", sT0, sT0, sITEM))
    e(salu("s_sub_u32", sT0, sT0, 1))
    e(salu("s_lshl_b32", sT0, sT0, 2))
    e(salu("s_add_u32", sT0, sT0, sWAVE))
    e(salu("s_lshl_b32", sT0, sT0, 6))
    e(raw("s_memrealtime s[56:57]", "salu"))
    e(wait(lgkm=0))
    for i in range(7):
        e(valu("v_mov_b32", T[0], S(sSTAMP + 2 * i)))
        e(valu("v_mov_b32", T[1], S(sSTAMP + 2 * i + 1)))
        e(valu("v_mov_b32", T[8], 0))
        e(I(f"buffer_store_dwordx2 v[22:23], {T[8]}, {sDBG}, {sT0} offen offset:{8 * i}", "store", r=["v22", "v23", T[8].regs()[0]] + sDBG.regs(), data=["v22", "v23"]))
        e(wait(vm=0))
    o, _ = fix(o)
    return o

def dump_schedule(G):
    for i, g in enumerate(G):
        s = " ".join(t[0] + str(t[1]) for t in g.sc)
        v = ""
        if g.ds: v += f" {g.ds[0]}{g.ds[1]}"
        if g.L: v += f" L:{g.L[0]}"
        v += " " + " ".join(it.name for it in g.vec)
        print(f"{i:3d} [{s:16s}] {v}", file=sys.stderr)

HEADER = """; GQA attention forward, bf16, B=16 Hq=16 Hkv=8 S=512 D=256.  Generated by my own generator script.
; @launch grid=(256,1,1) block=(256,1,1) lds=163840
.amdgcn_target "amdgcn-amd-amdhsa--gfx950"
.text
.globl {name}
.p2align 8
.type {name},@function
{name}:
"""
FOOTER = """    s_endpgm
.section .rodata,"a"
.p2align 6
.amdhsa_kernel {name}
  .amdhsa_next_free_vgpr 512
  .amdhsa_next_free_sgpr 102
  .amdhsa_accum_offset 256
  .amdhsa_group_segment_fixed_size 0
  .amdhsa_kernarg_size 48
  .amdhsa_user_sgpr_count 2
  .amdhsa_user_sgpr_kernarg_segment_ptr 1
  .amdhsa_system_sgpr_workgroup_id_x 1
  .amdhsa_float_denorm_mode_32 3
.end_amdhsa_kernel
"""

def generate(path):
    prog, G = build()
    txt = HEADER.format(name=NAME) + render(prog) + FOOTER.format(name=NAME)
    open(path, "w").write(txt)
    return G

if __name__ == "__main__":
    out = sys.argv[1] if len(sys.argv) > 1 else "k.s"
    for a in sys.argv[2:]:
        k, v = a.split("=")
        cur = getattr(OPT, k)
        setattr(OPT, k, type(cur)(eval(v)))
    G = generate(out)
    if "-" in sys.argv[0:0]:
        pass
    import os
    if os.environ.get("DUMP"):
        dump_schedule(G)
```

```python
import sys, math
from isa import *

NAME = "standalone__gqa_softmax__near_ridge_kernel"

class Opt:
    diag = False
    dbg = False
    dbgwg = 0
    sm_start = 64
    sm_end = 184
    thr = 65536.0
    q_nt = False
    o_nt = False
    kv_nt = False
OPT = Opt()

AK = [V(2), V(3)]
AV = [V(4), V(5), V(6), V(7)]
DK, DV = V(8), V(9)
NMC = [V(10 + i) for i in range(4)]
L = [V(14 + i) for i in range(4)]
TS = [V(18 + i) for i in range(4)]
T = [V(22 + i) for i in range(10)]
TQ = V(24, 4)
FR = [V(32 + 4 * i, 4) for i in range(4)]
QA = V(48)
EW = V(49)
ER = V(50)
OA = V(51)
INV = [V(52 + i) for i in range(4)]
SB = [V(64, 32), V(96, 32)]

def Sreg(buf, r, kb):
    return V(SB[buf].b + r * 8 + kb * 4, 4)
def Sel(buf, r, e):
    return V(SB[buf].b + r * 8 + e)
def Preg(buf, r):
    return V(SB[buf].b + r * 8, 4)
def Oreg(db, r):
    if r < 2:
        return V(128 + (r * 16 + db) * 4, 4)
    return A(128 + ((r - 2) * 16 + db) * 4, 4)
def Qreg(r, s):
    return A((r * 8 + s) * 4, 4)

SQ, SK, SV, SO = S(4, 4), S(8, 4), S(12, 4), S(16, 4)
sWAVE, sWB = S(20), S(21)
sKOFF, sVOFF, sCNT, sITEM, sC, sTHR = S(22), S(23), S(24), S(25), S(26), S(27)
sQOFF, sKTILE, sKEND, sKNEXT = S(28), S(29), S(30), S(31)
sKVB, sT0, sT1, sT2 = S(32), S(33), S(34), S(35)
sPAIR0, sQUART = S(36), S(37)
sDBG = S(40, 4)
sSTAMP = 44

KSLOT = [0, 16384]
VSLOT = [32768, 49152]
EPI_BASE = 65536
EPI_WAVE = 24576
EPI_ROW = 528
EPI_BUF = 16 * EPI_ROW
TILE = 16384
OOB = 0x80000000

def k_read(frag, slot):
    s, kb = frag >> 1, frag & 1
    return ds_read("ds_read_b128", FR[frag % 4], AK[s & 1], KSLOT[slot] + (s >> 1) * 4096 + kb * 2048)

def v_read(db, u, slot):
    fr = FR[(16 + db) % 4]
    return ds_read("ds_read_b64_tr_b16", fr[2 * u:2 * u + 2], AV[db & 3], VSLOT[slot] + (db >> 2) * 4096 + u * 2048)

def qk_mfma(pos, nxt):
    s, kb, r = pos >> 3, (pos >> 2) & 1, pos & 3
    D = Sreg(nxt, r, kb)
    return mfma16(D, FR[(2 * s + kb) % 4], Qreg(r, s), 0 if s == 0 else D)

def pv_mfma(pos, cur, first):
    db, r = pos >> 2, pos & 3
    D = Oreg(db, r)
    return mfma16(D, FR[(16 + db) % 4], Preg(cur, r), 0 if first else D)

def dma_m0(slotbase, cb):
    return salu("s_add_u32", "m0", sWB, slotbase + cb * (4096 - 128))
def dma_k(cb):
    return buf_dma(DK, SK, sKOFF, cb * 128, 'nt' if OPT.kv_nt else '')
def dma_v(cb):
    return buf_dma(DV, SV, sVOFF, cb * 128, 'nt' if OPT.kv_nt else '')

def adv(sreg):
    return [salu("s_add_u32", sreg, sreg, TILE), salu("s_cmp_eq_u32", sreg, sKEND), salu("s_cselect_b32", sreg, sKNEXT, sreg)]

class It:
    def __init__(self, kind, fn, deps=(), name=""):
        self.kind, self.fn, self.deps, self.name = kind, fn, list(deps), name
        self.gap = None

def softmax_items():
    F, E, Ad, C = {}, {}, {}, {}
    for p in range(16):
        r, k = p >> 2, p & 3
        for x in range(2):
            e = 2 * k + x
            F[p, x] = It("1", (lambda b, r=r, e=e: valu("v_fma_f32", Sel(b, r, e), Sel(b, r, e), sC, NMC[r])), name=f"F{p}{x}")
            E[p, x] = It("E", (lambda b, r=r, e=e: valu("v_exp_f32", Sel(b, r, e), Sel(b, r, e))), [(F[p, x], 1)], name=f"E{p}{x}")
        if k == 0:
            Ad[p, 0] = None
            Ad[p, 1] = It("1", (lambda b, r=r: valu("v_add_f32", TS[r], Sel(b, r, 0), Sel(b, r, 1))), [(E[p, 0], 1), (E[p, 1], 1)], name=f"A{p}")
        else:
            Ad[p, 0] = It("1", (lambda b, r=r, e=2 * k: valu("v_add_f32", TS[r], TS[r], Sel(b, r, e))), [(E[p, 0], 1), (Ad[p - 1, 1], 0)], name=f"A{p}0")
            Ad[p, 1] = It("1", (lambda b, r=r, e=2 * k + 1: valu("v_add_f32", TS[r], TS[r], Sel(b, r, e))), [(E[p, 1], 1), (Ad[p, 0], 0)], name=f"A{p}1")
        deps = [(E[p, 0], 1), (E[p, 1], 1), (Ad[p, 1], 0)]
        if k > 0:
            deps.append((C[p - 1], 0))
        C[p] = It("1", (lambda b, r=r, k=k: valu("v_cvt_pk_bf16_f32", Sel(b, r, k), Sel(b, r, 2 * k), Sel(b, r, 2 * k + 1))), deps, name=f"C{p}")
    order = [F[0, 0], F[0, 1], E[0, 0], E[0, 1]]
    for p in range(16):
        if p + 1 < 16:
            order += [F[p + 1, 0], F[p + 1, 1]]
        if Ad[p, 0] is not None:
            order.append(Ad[p, 0])
        order += [Ad[p, 1], C[p]]
        if p + 1 < 16:
            order += [E[p + 1, 0], E[p + 1, 1]]
    last_adds = [Ad[4 * r + 3, 1] for r in range(4)]
    return order, last_adds

def check_items(last_adds):
    t0, t1 = T[0], T[1]
    c0 = It("1", lambda b: valu("v_add_f32", t0, TS[0], TS[1]), [(last_adds[0], 0), (last_adds[1], 0)], "c0")
    c1 = It("1", lambda b: valu("v_add_f32", t1, TS[2], TS[3]), [(last_adds[2], 0), (last_adds[3], 0)], "c1")
    c2 = It("1", lambda b: valu("v_add_f32", t0, t0, t1), [(c0, 0), (c1, 0)], "c2")
    c3 = It("1", lambda b: vcmp("v_cmp_nge_f32", sTHR, t0), [(c2, 0)], "c3")
    return [c0, c1, c2, c3]

class Gap:
    def __init__(self):
        self.sc = []
        self.ds = None
        self.L = None
        self.vec = []
        self.tail = []
    def cap(self):
        if self.L is not None:
            return 0
        used = sum(2 if it.kind == "E" else 1 for it in self.vec)
        return (1 if self.ds is not None else 2) - used

def build_schedule():
    G = [Gap() for _ in range(128)]
    nreads = lambda m: 1 if (m % 32) < 16 else 2
    for n in range(1, 33):
        g = 4 * n - 1
        G[g].sc.append(("W", n % 32, lambda c, n=n: wait_for(FR[n % 4].regs())))
        m = n + 3
        if m < 16:
            G[g].ds = ("K", m, lambda c, m=m: k_read(m, 1 - c["p"]))
        elif m < 32:
            G[g].ds = ("V", m, lambda c, m=m: v_read(m - 16, 0, c["p"]))
            G[g + 1].ds = ("V", m, lambda c, m=m: v_read(m - 16, 1, c["p"]))
        else:
            G[g].ds = ("Kn", m, lambda c, m=m: k_read(m - 32, c["p"]))
    G[0].sc.append(("barV", 0, lambda c: wait(vm=c.get("vmV", 4))))
    G[1].sc.append(("barV", 1, lambda c: bar()))
    for cb in range(4):
        G[4 + 4 * cb].sc.append(("dmaV", cb, lambda c, cb=cb: dma_m0(VSLOT[1 - c["p"]], cb)))
        G[5 + 4 * cb].L = ("dmaV", cb, lambda c, cb=cb: dma_v(cb))
    for i in range(3):
        G[20 + i].sc.append(("advV", i, lambda c, i=i: adv(sVOFF)[i]))
    G[65].sc.append(("barK", 0, lambda c: wait(vm=c.get("vmK", 4))))
    G[66].sc.append(("barK", 1, lambda c: bar()))
    for cb in range(4):
        G[69 + 4 * cb].sc.append(("dmaK", cb, lambda c, cb=cb: dma_m0(KSLOT[1 - c["p"]], cb)))
        G[70 + 4 * cb].L = ("dmaK", cb, lambda c, cb=cb: dma_k(cb))
    for i in range(3):
        G[84 + i].sc.append(("advK", i, lambda c, i=i: adv(sKOFF)[i]))
    order, last_adds = softmax_items()
    chk = check_items(last_adds)
    allit = order + chk
    n = len(order)
    span = OPT.sm_end - OPT.sm_start
    lo = {}
    for i, it in enumerate(order):
        lo[it] = OPT.sm_start + int(span * i / n)
    for it in chk:
        lo[it] = OPT.sm_start
    pend = list(allit)
    for gg in range(OPT.sm_start, 128 + 62):
        g = G[gg % 128]
        while True:
            cap = g.cap()
            if cap <= 0:
                break
            pick = None
            for it in pend[:12]:
                if lo[it] > gg:
                    continue
                if it.kind == "E" and (cap < 2 or g.ds is not None):
                    continue
                ok = all(d.gap is not None and d.gap + dist <= gg for d, dist in it.deps)
                if ok:
                    pick = it
                    break
            if pick is None:
                break
            pick.gap = gg
            g.vec.append(pick)
            pend.remove(pick)
        if not pend:
            break
    assert not pend, [it.name for it in pend]
    gchk = chk[-1].gap
    gb = gchk + 1
    assert gb < 128 + 60
    G[gb % 128].sc.append(("chkbr", 0, lambda c: branch("s_cbranch_vccnz", f"L_slow{c['p']}_{c['tag']}")))
    G[gb % 128].sc.append(("chkret", 0, lambda c: label(f"L_ret{c['p']}_{c['tag']}")))
    ladd = [It("1", (lambda b, r=r: valu("v_add_f32", L[r], L[r], TS[r])), name=f"l{r}") for r in range(4)]
    gg = gb
    pend = list(ladd)
    while pend:
        g = G[gg % 128]
        while g.cap() > 0 and pend:
            it = pend.pop(0)
            it.gap = gg
            g.vec.append(it)
        gg += 1
    assert gg <= 128 + 63
    G[gg % 128].sc.append(("ktile", 0, lambda c: salu("s_add_u32", sKTILE, sKTILE, TILE)))
    return G, gchk

def emit_gap(g, gi, c, skip=()):
    out = []
    buf = (1 - c["p"]) if gi >= 64 else c["p"]
    for tag, idx, fn in g.sc:
        if tag in skip: continue
        out.append(fn(c))
    if g.ds is not None and g.ds[0] not in skip:
        out.append(g.ds[2](c))
    if g.L is not None and g.L[0] not in skip:
        out.append(g.L[2](c))
    if not (("sm" in skip) or ("smA" in skip and gi < 64) or ("smB" in skip and gi >= 64)):
        for it in g.vec:
            out.append(it.fn(buf))
    return out

def phaseA(G, c, mf=True, skip=()):
    out = []
    for pos in range(64):
        if mf:
            out.append(qk_mfma(pos, 1 - c["p"]))
        out += emit_gap(G[pos], pos, c, skip)
    return out

def phaseB(G, c, first=False, skip=()):
    out = []
    for pos in range(64):
        out.append(pv_mfma(pos, c["p"], first))
        out += emit_gap(G[64 + pos], 64 + pos, c, skip)
    return out

def xreduce(op, X, tmp):
    out = []
    for swap in ("v_permlane32_swap_b32", "v_permlane16_swap_b32"):
        for r in range(4):
            out.append(valu("v_mov_b32", tmp[r], X[r]))
        for r in range(4):
            out.append(valu(swap, X[r], tmp[r]))
        for r in range(4):
            out.append(valu(op, X[r], X[r], tmp[r]))
    return out

def rowmax(buf, X):
    out = []
    for r in range(4):
        out.append(valu("v_max3_f32", X[r], Sel(buf, r, 0), Sel(buf, r, 1), Sel(buf, r, 2)))
    for r in range(4):
        out.append(valu("v_max3_f32", X[r], X[r], Sel(buf, r, 3), Sel(buf, r, 4)))
    for r in range(4):
        out.append(valu("v_max3_f32", X[r], X[r], Sel(buf, r, 5), Sel(buf, r, 6)))
    for r in range(4):
        out.append(valu("v_max_f32", X[r], X[r], Sel(buf, r, 7)))
    return out

def softmax_linear(buf, which=None):
    order, _ = softmax_items()
    return [it.fn(buf) for it in order]

def slow_path(p, tag):
    o = [label(f"L_slow{p}_{tag}"), nop(7)]
    for kb in range(2):
        o.append(salu("s_add_u32", sT0, sKTILE, kb * 8192))
        for s in range(8):
            o.append(buf_load(TQ, QA, SK, sT0, s * 64))
            o.append(wait(vm=0))
            for r in range(4):
                D = Sreg(p, r, kb)
                o.append(mfma16(D, TQ, Qreg(r, s), 0 if s == 0 else D))
            o.append(nop(3))
    o.append(nop(7))
    X = TS
    o += rowmax(p, X)
    o += xreduce("v_max_f32", X, [TQ[i] for i in range(4)])
    al = [TQ[i] for i in range(4)]
    for r in range(4):
        o.append(valu("v_mul_f32", X[r], sC, X[r]))
        o.append(valu("v_sub_f32", X[r], 0, X[r]))
        o.append(valu("v_min_f32", X[r], X[r], NMC[r]))
        o.append(valu("v_sub_f32", al[r], X[r], NMC[r]))
        o.append(valu("v_exp_f32", al[r], al[r]))
        o.append(valu("v_mov_b32", NMC[r], X[r]))
    for r in range(4):
        o.append(valu("v_mul_f32", L[r], L[r], al[r]))
    for r in range(4):
        for db in range(16):
            O = Oreg(db, r)
            for i in range(4):
                if O.t == "v":
                    o.append(valu("v_mul_f32", O[i], O[i], al[r]))
                else:
                    o.append(valu("v_accvgpr_read_b32", T[0], O[i]))
                    o.append(valu("v_mul_f32", T[0], T[0], al[r]))
                    o.append(valu("v_accvgpr_write_b32", O[i], T[0]))
    o += softmax_linear(p)
    o.append(nop(1))
    o.append(branch("s_branch", f"L_ret{p}_{tag}"))
    o, _ = fix(o)
    return o

def stamp(i):
    if not OPT.diag:
        return []
    a = sSTAMP + 4 * i
    return [raw(f"s_memtime s[{a}:{a + 1}]", "salu"), raw(f"s_memrealtime s[{a + 2}:{a + 3}]", "salu"), wait(lgkm=0)]

def setup():
    o = []
    e = o.append
    e(salu("s_cmp_ge_u32", S(2), 256))
    e(branch("s_cbranch_scc1", "L_end"))
    for i, srd in enumerate((SQ, SK, SV, SO)):
        e(raw(f"s_load_dwordx2 s[{srd.b}:{srd.b + 1}], s[0:1], {8 * i}", "salu", w=srd[0:2].regs()))
    if OPT.diag:
        e(raw(f"s_load_dwordx2 s[{sDBG.b}:{sDBG.b + 1}], s[0:1], {32 if OPT.dbg else 40}", "salu", w=sDBG[0:2].regs()))
    for srd, nb in ((SQ, 0x4000000), (SK, 0x2000000), (SV, 0x2000000), (SO, 0x4000000)):
        e(salu("s_mov_b32", srd[2], nb))
        e(salu("s_mov_b32", srd[3], 0x20000))
    if OPT.diag:
        e(salu("s_mov_b32", sDBG[2], 256 if OPT.dbg else 0x10000000))
        e(salu("s_mov_b32", sDBG[3], 0x20000))
    lane, i16, Gq, t0, t1, t2 = T[0], T[1], T[2], T[3], T[4], T[5]
    e(valu("v_and_b32", lane, 63, V(0)))
    e(valu("v_lshrrev_b32", t0, 6, V(0)))
    e(nop(0))
    e(I(f"v_readfirstlane_b32 {sWAVE}, {t0}", "valu", r=t0.regs(), w=sWAVE.regs()))
    e(valu("v_and_b32", i16, 15, lane))
    e(valu("v_lshrrev_b32", Gq, 4, lane))
    e(nop(1))
    e(salu("s_lshl_b32", sWB, sWAVE, 10))
    e(valu("v_lshrrev_b32", t0, 1, i16))
    for b in range(2):
        e(valu("v_add_u32", t1, 4 * b, Gq))
        e(valu("v_xor_b32", t1, t1, t0))
        e(valu("v_lshlrev_b32", t1, 4, t1))
        e(valu("v_lshlrev_b32", t2, 7, i16))
        e(valu("v_add_u32", AK[b], t1, t2))
    key = T[6]
    e(valu("v_lshrrev_b32", t0, 2, i16))
    e(valu("v_lshlrev_b32", key, 2, Gq))
    e(valu("v_add_u32", key, key, t0))
    e(valu("v_lshrrev_b32", t0, 1, key))
    e(valu("v_and_b32", t0, 3, t0))
    e(valu("v_and_b32", t2, 3, i16))
    e(valu("v_lshlrev_b32", t2, 3, t2))
    e(valu("v_lshlrev_b32", key, 7, key))
    e(valu("v_add_u32", key, key, t2))
    for pi in range(4):
        e(valu("v_xor_b32", t1, pi, t0))
        e(valu("v_lshlrev_b32", t1, 5, t1))
        e(valu("v_add_u32", AV[pi], t1, key))
    dk = T[6]
    e(valu("v_lshrrev_b32", dk, 3, lane))
    e(salu("s_lshl_b32", sT0, sWAVE, 3))
    e(valu("v_add_u32", dk, sT0, dk))
    e(valu("v_and_b32", t2, 7, lane))
    e(valu("v_lshrrev_b32", t0, 1, dk))
    e(valu("v_and_b32", t1, 7, t0))
    e(valu("v_xor_b32", t1, t1, t2))
    e(valu("v_lshlrev_b32", t1, 4, t1))
    e(valu("v_lshlrev_b32", T[7], 9, dk))
    e(valu("v_add_u32", DK, T[7], t1))
    e(valu("v_and_b32", t1, 3, t0))
    e(valu("v_lshlrev_b32", t1, 1, t1))
    e(valu("v_xor_b32", t1, t1, t2))
    e(valu("v_lshlrev_b32", t1, 4, t1))
    e(valu("v_add_u32", DV, T[7], t1))
    e(valu("v_lshlrev_b32", t0, 9, i16))
    e(valu("v_lshlrev_b32", t1, 4, Gq))
    e(valu("v_add_u32", QA, t0, t1))
    e(salu("s_mul_i32", sT0, sWAVE, EPI_WAVE))
    e(salu("s_add_u32", sT0, sT0, EPI_BASE))
    e(valu("v_mul_u32_u24", t0, EPI_ROW, i16))
    e(valu("v_lshlrev_b32", t1, 3, Gq))
    e(valu("v_add_u32", t0, t0, t1))
    e(valu("v_add_u32", EW, sT0, t0))
    e(valu("v_lshrrev_b32", t0, 5, lane))
    e(valu("v_mul_u32_u24", t0, EPI_ROW, t0))
    e(valu("v_and_b32", t1, 31, lane))
    e(valu("v_lshlrev_b32", t1, 4, t1))
    e(valu("v_add_u32", t0, t0, t1))
    e(valu("v_add_u32", ER, sT0, t0))
    e(valu("v_lshlrev_b32", OA, 4, lane))
    cval = (256 ** -0.5) * math.log2(math.e)
    import struct
    e(salu("s_mov_b32", sC, hex(struct.unpack("<I", struct.pack("<f", cval))[0])))
    e(salu("s_mov_b32", sTHR, hex(struct.unpack("<I", struct.pack("<f", OPT.thr))[0])))
    e(salu("s_and_b32", sT0, S(2), 7))
    e(salu("s_lshr_b32", sT1, S(2), 3))
    e(salu("s_and_b32", sQUART, sT1, 3))
    e(salu("s_lshr_b32", sT1, sT1, 2))
    e(salu("s_lshl_b32", sT0, sT0, 3))
    e(salu("s_add_u32", sPAIR0, sT0, sT1))
    e(salu("s_mov_b32", sITEM, 0))
    e(wait(lgkm=0))
    return o

def item_setup():
    o = []
    e = o.append
    e(salu("s_lshl_b32", sT0, sITEM, 6))
    e(salu("s_add_u32", sT0, sT0, sPAIR0))
    e(salu("s_lshl_b32", sKVB, sT0, 18))
    e(salu("s_lshl_b32", sQOFF, sT0, 19))
    e(salu("s_lshl_b32", sT1, sQUART, 17))
    e(salu("s_add_u32", sQOFF, sQOFF, sT1))
    e(salu("s_lshl_b32", sT1, sWAVE, 15))
    e(salu("s_add_u32", sQOFF, sQOFF, sT1))
    e(salu("s_add_u32", sKEND, sKVB, 16 * TILE))
    e(salu("s_add_u32", sT1, sKVB, 64 << 18))
    e(salu("s_cmp_eq_u32", sITEM, 0))
    e(salu("s_cselect_b32", sKNEXT, sT1, OOB))
    e(salu("s_mov_b32", sKTILE, sKVB))
    return o

def q_loads():
    o = []
    for r in range(4):
        o.append(salu("s_add_u32", sT0, sQOFF, r * 8192))
        for s in range(8):
            o.append(buf_load(Qreg(r, s), QA, SQ, sT0, s * 64, "nt" if OPT.q_nt else ""))
    return o

def dma_tile(kind, slot, soff):
    o = []
    for cb in range(4):
        o.append(dma_m0((KSLOT if kind == "K" else VSLOT)[slot], cb))
        o.append(nop(0))
        o.append(buf_dma(DK if kind == "K" else DV, SK if kind == "K" else SV, soff, cb * 128, 'nt' if OPT.kv_nt else ''))
    return o

def lead_in_K(slot):
    return [k_read(f, slot) for f in range(4)] + [wait_for(FR[0].regs())]
def lead_in_V(slot):
    o = []
    for db in range(4):
        o += [v_read(db, 0, slot), v_read(db, 1, slot)]
    return o + [wait_for(FR[0].regs())]

def epilogue():
    o = []
    e = o.append
    tmp = [T[i] for i in range(4)]
    o += xreduce("v_add_f32", L, tmp)
    for r in range(4):
        e(valu("v_rcp_f32", INV[r], L[r]))
    PK = [V(64 + i) for i in range(8)]
    RB = [V(96 + 4 * i, 4) for i in range(8)]
    AT = [V(72 + i) for i in range(16)]
    def write_block(r):
        w = []
        base = (r & 1) * EPI_BUF
        for db in range(16):
            O = Oreg(db, r)
            if O.t == "a":
                src = V(72 + 4 * (db & 3), 4)
                for i in range(4):
                    w.append(valu("v_accvgpr_read_b32", src[i], O[i]))
            else:
                src = O
            inv2 = V(INV[r].b & ~1, 2)
            sel = INV[r].b & 1
            mods = f"op_sel:[0,{sel}] op_sel_hi:[1,{sel}]"
            for i in (0, 2):
                w.append(valu("v_pk_mul_f32", src[i:i + 2], src[i:i + 2], inv2, mods=mods))
            pk = V(64 + 2 * (db & 3), 2)
            w.append(valu("v_cvt_pk_bf16_f32", pk[0], src[0], src[1]))
            w.append(valu("v_cvt_pk_bf16_f32", pk[1], src[2], src[3]))
            w.append(ds_write("ds_write_b64", EW, pk, base + db * 32))
        return w
    def read_store(r):
        w = []
        base = (r & 1) * EPI_BUF
        for i in range(8):
            w.append(ds_read("ds_read_b128", RB[i], ER, base + i * 2 * EPI_ROW))
        w.append(salu("s_add_u32", sT0, sQOFF, r * 8192))
        w.append(salu("s_add_u32", sT1, sQOFF, r * 8192 + 4096))
        for i in range(8):
            w.append(wait(lgkm=7 - i))
            w.append(buf_store(RB[i], OA, SO, sT0 if i < 4 else sT1, (i & 3) * 1024, "nt" if OPT.o_nt else ""))
        return w
    for r in range(4):
        o += write_block(r)
        o += read_store(r)
    return o

def build():
    G, gchk = build_schedule()
    pre = setup()
    it = [label("L_item")]
    it += item_setup()
    it += stamp(0)
    it.append(salu("s_cmp_eq_u32", sITEM, 0))
    it.append(branch("s_cbranch_scc0", "L_skip_first"))
    it.append(salu("s_add_u32", sT2, sKVB, TILE))
    it += dma_tile("K", 0, sKVB)
    it += dma_tile("K", 1, sT2)
    it += dma_tile("V", 0, sKVB)
    it.append(label("L_skip_first"))
    it.append(salu("s_add_u32", sKOFF, sKVB, 2 * TILE))
    it.append(salu("s_add_u32", sVOFF, sKVB, TILE))
    it += q_loads()
    it.append(wait(vm=0))
    it.append(bar())
    it += stamp(1)
    c = dict(p=1, tag="x")
    it += lead_in_K(0)
    skipP = ("V", "Kn", "barV", "dmaV", "advV", "sm", "chkbr", "chkret", "ktile")
    a = phaseA(G, c, True, skipP)
    it += a
    it.append(wait(lgkm=0))
    it.append(bar())
    it += dma_tile("K", 0, sKOFF)
    it += adv(sKOFF)
    it.append(nop(7))
    it += rowmax(0, TS)
    it += xreduce("v_max_f32", TS, [TQ[i] for i in range(4)])
    for r in range(4):
        it.append(valu("v_mul_f32", TS[r], sC, TS[r]))
        it.append(valu("v_sub_f32", NMC[r], 0, TS[r]))
        it.append(valu("v_mov_b32", L[r], 0))
    c = dict(p=1, tag="x")
    for gi in range(64, 128):
        for x in G[gi].vec:
            it.append(x.fn(0))
    it += lead_in_K(1)
    it += stamp(2)
    c0 = dict(p=0, tag="i0", vmV=4)
    it += phaseA(G, c0)
    it += phaseB(G, c0, first=True)
    it.append(salu("s_mov_b32", sCNT, 7))
    it = resolve_waits(it)
    it, n_ins = fix(it)
    body = [label("L_loop")]
    c1 = dict(p=1, tag="lp")
    c2 = dict(p=0, tag="lp")
    body += phaseA(G, c1) + phaseB(G, c1)
    b2 = phaseA(G, c2) + phaseB(G, c2)
    idx = max(i for i, x in enumerate(b2) if x.kind == "mfma" and i < len(b2) - 8)
    mf = [i for i, x in enumerate(b2) if x.kind == "mfma"]
    b2.insert(mf[-2] + 1, salu("s_cmp_lg_u32", sCNT, 0))
    b2.insert(mf[-3] + 1, salu("s_sub_u32", sCNT, sCNT, 1))
    body += b2
    body.append(branch("s_cbranch_scc1", "L_loop"))
    body = resolve_waits(body, prev=body)
    tail = []
    c15 = dict(p=1, tag="i15")
    tail.append(wait(lgkm=0))
    tail += stamp(3)
    a15 = phaseA(G, c15, False, ("W", "K", "V", "Kn"))
    tail += a15
    tail += lead_in_V(1)
    tail += phaseB(G, c15, False, ("Kn", "dmaK", "advK", "smB"))
    tail.append(wait(lgkm=0))
    tail += stamp(4)
    tail.append(nop(7))
    tail += epilogue()
    tail += stamp(5)
    tail.append(salu("s_add_u32", sITEM, sITEM, 1))
    tail.append(salu("s_cmp_lt_u32", sITEM, 2))
    if OPT.diag:
        pass
    tail.append(branch("s_cbranch_scc1", "L_item_j"))
    tail = resolve_waits(tail, prev=body)
    tail, n2 = fix(tail, prev=body[-40:])
    fin = []
    if OPT.diag:
        fin += diag_out()
    fin.append(branch("s_branch", "L_end"))
    fin.append(label("L_item_j"))
    if OPT.diag:
        fin += diag_out()
    fin.append(branch("s_branch", "L_item"))
    slow = slow_path(0, "i0") + slow_path(1, "lp") + slow_path(0, "lp") + slow_path(1, "i15")
    pre, _ = fix(pre)
    probs = []
    probs += check(pre + it + body + body + tail, "main")
    print(f"; nops inserted: item {n_ins}, tail {n2}; check gap {gchk}", file=sys.stderr)
    lb, nb = fix(body + body)
    if nb:
        print("WARNING: loop body needs nops:", nb, file=sys.stderr)
    for p in probs[:40]:
        print("PROBLEM", p, file=sys.stderr)
    prog = pre + it + [raw(".p2align 6", "label")] + body + tail + fin + slow + [label("L_end")]
    return prog, G

def diag_out():
    o = []
    e = o.append
    e(wait(vm=0, lgkm=0))
    o += stamp(6)
    e(salu("s_lshl_b32", sT0, S(2), 1))
    e(salu("s_add_u32", sT0, sT0, sITEM))
    e(salu("s_sub_u32", sT0, sT0, 1))
    e(salu("s_lshl_b32", sT0, sT0, 2))
    e(salu("s_add_u32", sT0, sT0, sWAVE))
    e(salu("s_lshl_b32", sT0, sT0, 6))
    if OPT.dbg:
        e(salu("s_sub_u32", sT0, sITEM, 1))
        e(salu("s_lshl_b32", sT0, sT0, 5))
        e(salu("s_lshl_b32", sT1, sWAVE, 16))
        e(salu("s_add_u32", sT0, sT0, sT1))
        e(salu("s_sub_u32", sT1, S(2), OPT.dbgwg))
        e(salu("s_lshl_b32", sT1, sT1, 20))
        e(salu("s_add_u32", sT0, sT0, sT1))
    e(valu("v_mov_b32", T[8], 0))
    for i in range(7):
        e(valu("v_mov_b32", T[0], S(sSTAMP + 4 * i)))
        e(valu("v_mov_b32", T[1], S(sSTAMP + 4 * i + 2)))
        if OPT.dbg:
            e(I(f"buffer_store_dword v23, {T[8]}, {sDBG}, {sT0} offen offset:{4 * i}", "store", r=["v23", T[8].regs()[0]] + sDBG.regs(), data=["v23"]))
            if i == 6:
                e(valu("v_mov_b32", T[1], S(sSTAMP + 4 * 3)))
                e(valu("v_sub_u32", T[1], T[1], S(sSTAMP + 4 * 2))) if False else None
        else:
            e(I(f"buffer_store_dwordx2 v[22:23], {T[8]}, {sDBG}, {sT0} offen offset:{8 * i}", "store", r=["v22", "v23", T[8].regs()[0]] + sDBG.regs(), data=["v22", "v23"]))
        e(wait(vm=0))
    if OPT.dbg:
        e(salu("s_sub_u32", sT1, S(sSTAMP + 4 * 3), S(sSTAMP + 4 * 2)))
        e(valu("v_mov_b32", T[1], sT1))
        e(I(f"buffer_store_dword v23, {T[8]}, {sDBG}, {sT0} offen offset:28", "store", r=["v23", T[8].regs()[0]] + sDBG.regs(), data=["v23"]))
        e(wait(vm=0))
    o, _ = fix(o)
    return o

def dump_schedule(G):
    for i, g in enumerate(G):
        s = " ".join(t[0] + str(t[1]) for t in g.sc)
        v = ""
        if g.ds: v += f" {g.ds[0]}{g.ds[1]}"
        if g.L: v += f" L:{g.L[0]}"
        v += " " + " ".join(it.name for it in g.vec)
        print(f"{i:3d} [{s:16s}] {v}", file=sys.stderr)

HEADER = """; GQA attention forward, bf16, B=16 Hq=16 Hkv=8 S=512 D=256.  Generated by my own generator script.
; @launch grid=(256,1,1) block=(256,1,1) lds=163840
.amdgcn_target "amdgcn-amd-amdhsa--gfx950"
.text
.globl {name}
.p2align 8
.type {name},@function
{name}:
"""
FOOTER = """    s_endpgm
.section .rodata,"a"
.p2align 6
.amdhsa_kernel {name}
  .amdhsa_next_free_vgpr 512
  .amdhsa_next_free_sgpr 102
  .amdhsa_accum_offset 256
  .amdhsa_group_segment_fixed_size 0
  .amdhsa_kernarg_size 48
  .amdhsa_user_sgpr_count 2
  .amdhsa_user_sgpr_kernarg_segment_ptr 1
  .amdhsa_system_sgpr_workgroup_id_x 1
  .amdhsa_float_denorm_mode_32 3
.end_amdhsa_kernel
"""

def generate(path):
    prog, G = build()
    txt = HEADER.format(name=NAME) + render(prog) + FOOTER.format(name=NAME)
    open(path, "w").write(txt)
    return G

if __name__ == "__main__":
    out = sys.argv[1] if len(sys.argv) > 1 else "k.s"
    for a in sys.argv[2:]:
        k, v = a.split("=")
        cur = getattr(OPT, k)
        setattr(OPT, k, type(cur)(eval(v)))
    G = generate(out)
    if "-" in sys.argv[0:0]:
        pass
    import os
    if os.environ.get("DUMP"):
        dump_schedule(G)
```
